```python
import torch

def _softmax(x, axis=-1):
    return torch.softmax(x, dim=axis)
def _gelu(x):
    return torch.nn.functional.gelu(x, approximate="tanh")
def _silu(x):
    return torch.nn.functional.silu(x)
def _sigmoid(x):
    return torch.sigmoid(x)
def _layernorm(x, axis=-1, eps=1e-5):
    m = x.mean(dim=axis, keepdim=True)
    v = x.var(dim=axis, keepdim=True, unbiased=False)
    return (x - m) / torch.sqrt(v + eps)
def _scatter_add(tgt, idx, src, axis=0):
    return tgt.clone().index_add_(axis, idx, src)
def _segment_sum(src, seg, n):
    out = torch.zeros((n,) + src.shape[1:], dtype=src.dtype)
    return out.index_add_(0, seg, src)
def _pad(x, pw):
    flat = tuple(v for pair in reversed(pw) for v in pair)
    return torch.nn.functional.pad(x, flat)

kernel_name = 'sequential_preLN__sliding_block_cached__geglu_ffn__decode'

def setup_inputs():

    _w = (lambda a: (lambda t: t.to(torch.bfloat16) if t.is_floating_point() else t)(torch.as_tensor(a)))
    def _A_setup():
        B, Sq, D = 2, 1, 640
        Hq, Hkv, Sk, Dh = 32, 32, 8192, 192
        assert Hq % Hkv == 0, (Hq, Hkv)
        return {
            "x": _w((lambda *s: torch.randn(*s, dtype=torch.bfloat16) * 0.05)(B, Sq, D)),
            "k_cache": _w((lambda *s: torch.randn(*s, dtype=torch.bfloat16) * 3.2)(B, Hkv, Sk, Dh)),
            "v_cache": _w((lambda *s: torch.randn(*s, dtype=torch.bfloat16) * 0.4)(B, Hkv, Sk, Dh)),
            "wq": _w((lambda *s: torch.randn(*s, dtype=torch.bfloat16) * 3.2)(D, Hq * Dh) * (D ** -0.5)),
            "wo": _w((lambda *s: torch.randn(*s, dtype=torch.bfloat16) * 0.4)(Hq * Dh, D) * ((Hq * Dh) ** -0.5)),
        }
    _A_in = _A_setup()

    def _B_setup():
        B, S, D, F = 2, 1, 640, 1536
        return {
            "x": _w((lambda *s: torch.randn(*s, dtype=torch.bfloat16) * 0.05)(B, S, D)),
            "w_gate": _w((lambda *s: torch.randn(*s, dtype=torch.bfloat16) * 0.05)(D, F)),
            "w_up": _w((lambda *s: torch.randn(*s, dtype=torch.bfloat16) * 0.05)(D, F)),
            "w_down": _w((lambda *s: torch.randn(*s, dtype=torch.bfloat16) * 0.05)(F, D)),
        }
    _B_in = _B_setup()

    return {
        "A_x": _A_in["x"],
        "A_k_cache": _A_in["k_cache"],
        "A_v_cache": _A_in["v_cache"],
        "A_wq": _A_in["wq"],
        "A_wo": _A_in["wo"],
        "B_x": _B_in["x"],
        "B_w_gate": _B_in["w_gate"],
        "B_w_up": _B_in["w_up"],
        "B_w_down": _B_in["w_down"],
    }

def reference(A_x, A_k_cache, A_v_cache, A_wq, A_wo, B_x, B_w_gate, B_w_up, B_w_down):
    def _A_ref(x, k_cache, v_cache, wq, wo):
        B, Sq, D = x.shape
        Hq, Dh = 32, 192
        Hkv, Sk = k_cache.shape[1], k_cache.shape[2]
        W = min(4096, max(256, Sk // 4))
        rep = Hq // Hkv
        q = (lambda x, *d: x.permute(*d))((x @ wq).reshape(B, Sq, Hq, Dh), 0, 2, 1, 3)
        k = (lambda x, n, axis: torch.repeat_interleave(x, n, dim=axis))(k_cache[:, :, Sk - W:, :], rep, axis=1)
        v = (lambda x, n, axis: torch.repeat_interleave(x, n, dim=axis))(v_cache[:, :, Sk - W:, :], rep, axis=1)
        scores = torch.einsum("bhqd,bhkd->bhqk", q, k) * (Dh ** -0.5)
        p = _softmax(scores, axis=-1)
        o = torch.einsum("bhqk,bhkd->bhqd", p, v)
        return (lambda x, *d: x.permute(*d))(o, 0, 2, 1, 3).reshape(B, Sq, Hq * Dh) @ wo

    def _B_ref(x, w_gate, w_up, w_down):
        return (_gelu(x @ w_gate) * (x @ w_up)) @ w_down

    x = A_x
    h = x + _A_ref(_layernorm(x, axis=-1), A_k_cache, A_v_cache, A_wq, A_wo)
    h2 = h + _B_ref(_layernorm(h, axis=-1), B_w_gate, B_w_up, B_w_down)
    return h2
```

```python
import sys

NAME = "sequential_preLN__sliding_block_cached__geglu_ffn__decode"
OUT = "cdna_kernels/%s.s" % NAME
REF = OUT + ".ref"

LOG2E = 0x3fb8aa3b
SCALE = 0x3d93cd3a
EPS = 0x3727c5ac
INV640 = 0x3acccccd

WS_P2 = 0
WS_P3 = 0x40000
WS_P4 = 0x50000
WS_H = 0xD0000
WS_SIZE = 0x100000


class K:
    def __init__(self):
        self.l = []

    def __call__(self, s):
        for line in s.strip("\n").split("\n"):
            self.l.append("    " + line.strip())

    def label(self, s):
        self.l.append(s + ":")

    def text(self):
        return "\n".join(self.l) + "\n"

    def allreduce(self, op, v, t, sa):
        self(f"""
        s_nop 1
        {op}_dpp {t}, {v}, {v} quad_perm:[1,0,3,2] row_mask:0xf bank_mask:0xf
        s_nop 1
        {op}_dpp {v}, {t}, {t} quad_perm:[2,3,0,1] row_mask:0xf bank_mask:0xf
        s_nop 1
        {op}_dpp {t}, {v}, {v} row_half_mirror row_mask:0xf bank_mask:0xf
        s_nop 1
        {op}_dpp {v}, {t}, {t} row_mirror row_mask:0xf bank_mask:0xf
        s_nop 1
        v_readlane_b32 s{sa}, {v}, 0
        v_readlane_b32 s{sa+1}, {v}, 16
        v_readlane_b32 s{sa+2}, {v}, 32
        v_readlane_b32 s{sa+3}, {v}, 48
        s_nop 1
        v_mov_b32 {v}, s{sa}
        {op} {v}, s{sa+1}, {v}
        {op} {v}, s{sa+2}, {v}
        {op} {v}, s{sa+3}, {v}
        """)

    def bf16r(self, v):
        self(f"""
        v_cvt_pk_bf16_f32 {v}, {v}, {v}
        v_lshlrev_b32 {v}, 16, {v}
        """)

    def srd(self, d, base, size):
        self(f"""
        s_mov_b32 s{d}, s{base}
        s_and_b32 s{d+1}, s{base+1}, 0xffff
        s_mov_b32 s{d+2}, {size}
        s_mov_b32 s{d+3}, 0x00020000
        """)


def kd(name, vgpr, sgpr=96):
    acc = (vgpr + 3) // 4 * 4
    return f""".amdhsa_kernel {name}
  .amdhsa_next_free_vgpr {vgpr}
  .amdhsa_next_free_sgpr {sgpr}
  .amdhsa_accum_offset {acc}
  .amdhsa_group_segment_fixed_size 0
  .amdhsa_kernarg_size 96
  .amdhsa_user_sgpr_count 2
  .amdhsa_user_sgpr_kernarg_segment_ptr 1
  .amdhsa_system_sgpr_workgroup_id_x 1
.end_amdhsa_kernel
"""


def head(name):
    return f""".globl {name}
.p2align 8
.type {name},@function
{name}:
"""

A_LDS_Q = 0
A_LDS_M = 512
A_LDS_P = 1024
A_LDS_A = 4096
A_LDS_B = 53248
A_LDS_C = 102400
A_LDS = 122880


def gen_attn():
    k = K()
    ACC = 16
    KD = 40
    WD = 136
    QC = 232
    k(f"""
    s_cmp_ge_u32 s2, 256
    s_cbranch_scc1 L_attn_end
    s_load_dwordx4 s[4:7], s[0:1], 0
    s_load_dwordx4 s[8:11], s[0:1], 16
    s_load_dwordx2 s[12:13], s[0:1], 88
    v_lshrrev_b32 v2, 6, v0
    v_and_b32 v1, 63, v0
    s_nop 0
    v_readfirstlane_b32 s14, v2
    s_and_b32 s15, s2, 7
    s_lshr_b32 s16, s2, 3
    s_and_b32 s17, s16, 3
    s_lshl_b32 s15, s15, 2
    s_add_u32 s15, s15, s17        ; s15 = head
    s_lshr_b32 s17, s16, 2
    s_and_b32 s17, s17, 1          ; s17 = b
    s_lshr_b32 s18, s16, 3         ; s18 = split
    s_waitcnt lgkmcnt(0)
    """)
    k.srd(20, 4, 2560)
    k.srd(24, 6, 201326592)
    k.srd(28, 8, 201326592)
    k.srd(32, 10, 7864320)
    k.srd(36, 12, WS_SIZE)
    for j in range(3):
        k(f"""
        v_add_u32 v8, {64*j}, v1
        v_mul_u32_u24 v9, 683, v8
        v_lshrrev_b32 v9, 14, v9         ; r_j
        v_mul_u32_u24 v10, 24, v9
        v_sub_u32 v10, v8, v10           ; cc_j
        v_lshlrev_b32 v{11+j}, 4, v10    ; cc_j*16
        v_mul_u32_u24 v10, 12288, v9
        v_add_u32 v{2+j}, v10, v{11+j}   ; r_j*12288 + cc_j*16
        v_lshlrev_b32 v{5+j}, 2, v9      ; r_j*4
        """)
    k(f"""
    s_mul_i32 s40, s17, 1280
    v_lshlrev_b32 v8, 2, v1
    """)
    for kk in range(5):
        k(f"buffer_load_dword v{ACC+kk}, v8, s[20:23], s40 offen offset:{256*kk}")
    k(f"""
    s_mul_i32 s41, s14, {80*12288}
    s_mul_i32 s42, s15, 384
    s_add_u32 s41, s41, s42
    """)
    for g in range(10):
        for j in range(3):
            i = 3 * g + j
            k(f"buffer_load_dwordx4 v[{WD+4*i}:{WD+4*i+3}], v{2+j}, s[32:35], s41 offen")
        if g < 9:
            k(f"s_add_u32 s41, s41, {8*12288}")
    k(f"""
    s_lshl_b32 s43, s17, 5
    s_add_u32 s43, s43, s15
    s_lshl_b32 s43, s43, 13
    s_add_u32 s43, s43, 6144
    s_lshl_b32 s44, s18, 9
    s_add_u32 s43, s43, s44
    s_lshl_b32 s44, s14, 6
    s_add_u32 s43, s43, s44
    s_mul_i32 s43, s43, 384
    s_mov_b32 s44, s43
    v_lshlrev_b32 v9, 4, v1          ; l*16
    """)
    for i in range(24):
        k(f"buffer_load_dwordx4 v[{KD+4*i}:{KD+4*i+3}], v9, s[24:27], s44 offen offset:{1024*(i%4)} nt")
        if i % 4 == 3 and i < 23:
            k("s_add_u32 s44, s44, 4096")
    k("s_waitcnt vmcnt(54)")
    for kk in range(5):
        k(f"""
        v_lshlrev_b32 v{22+2*kk}, 16, v{ACC+kk}
        v_and_b32 v{23+2*kk}, 0xffff0000, v{ACC+kk}
        """)
    k("v_add_f32 v32, v22, v23")
    for e in range(2, 10):
        k(f"v_add_f32 v32, v32, v{22+e}")
    k.allreduce("v_add_f32", "v32", "v33", 48)
    k(f"""
    v_mul_f32 v32, {INV640}, v32
    v_mov_b32 v34, v32
    """)
    k.bf16r("v34")
    k("""
    v_sub_f32 v33, v22, v32
    v_mul_f32 v35, v33, v33
    """)
    for e in range(1, 10):
        k(f"""
        v_sub_f32 v33, v{22+e}, v32
        v_fmac_f32 v35, v33, v33
        """)
    k.allreduce("v_add_f32", "v35", "v33", 48)
    k(f"v_mul_f32 v35, {INV640}, v35")
    k.bf16r("v35")
    k(f"v_add_f32 v35, {EPS}, v35")
    k.bf16r("v35")
    k("v_sqrt_f32 v35, v35\ns_nop 0")
    k.bf16r("v35")
    k("v_rcp_f32 v35, v35\ns_nop 0")
    for e in range(10):
        k(f"v_sub_f32 v{22+e}, v{22+e}, v34")
        k.bf16r(f"v{22+e}")
        k(f"v_mul_f32 v{22+e}, v{22+e}, v35")
        k.bf16r(f"v{22+e}")
    k(f"""
    s_mul_i32 s45, s14, 2560
    s_add_u32 s45, s45, {A_LDS_C}
    v_lshlrev_b32 v8, 3, v1
    v_add_u32 v8, s45, v8
    """)
    for kk in range(5):
        k(f"ds_write_b64 v8, v[{22+2*kk}:{23+2*kk}] offset:{512*kk}")
    k(f"""
    s_mul_i32 s46, s14, 320
    s_add_u32 s46, s46, s45
    v_add_u32 v8, s46, v5
    v_add_u32 v9, s46, v6
    v_add_u32 v10, s46, v7
    s_waitcnt lgkmcnt(0)
    """)
    for a in range(24):
        k(f"v_mov_b32 v{ACC+a}, 0")
    def accum(k, data, sc, j):
        for d in range(4):
            k(f"""
            v_lshlrev_b32 v14, 16, v{data+d}
            v_and_b32 v15, 0xffff0000, v{data+d}
            v_fmac_f32 v{ACC+8*j+2*d}, {sc}, v14
            v_fmac_f32 v{ACC+8*j+2*d+1}, {sc}, v15
            """)
    for g in range(10):
        k(f"""
        ds_read_b32 v11, v8 offset:{32*g}
        ds_read_b32 v12, v9 offset:{32*g}
        ds_read_b32 v13, v10 offset:{32*g}
        """)
        for j in range(3):
            i = 3 * g + j
            k(f"s_waitcnt vmcnt({54-1-i}) lgkmcnt({2-j})")
            accum(k, WD + 4 * i, f"v{11+j}", j)
    k("s_mov_b32 s44, s43\nv_lshlrev_b32 v14, 4, v1")
    for i in range(24):
        k(f"buffer_load_dwordx4 v[{WD+4*i}:{WD+4*i+3}], v14, s[28:31], s44 offen offset:{1024*(i%4)} nt")
        if i % 4 == 3 and i < 23:
            k("s_add_u32 s44, s44, 4096")
    k(f"""
    s_mul_i32 s47, s14, 6144
    v_lshlrev_b32 v8, 5, v1
    v_add_u32 v8, s47, v8
    """)
    for j in range(3):
        k(f"""
        ds_write_b128 v8, v[{ACC+8*j}:{ACC+8*j+3}] offset:{A_LDS_A+2048*j}
        ds_write_b128 v8, v[{ACC+8*j+4}:{ACC+8*j+7}] offset:{A_LDS_A+2048*j+16}
        """)
    k("""
    s_waitcnt lgkmcnt(0)
    s_barrier
    s_cmp_ge_u32 s14, 3
    s_cbranch_scc1 L_attn_q_skip
    v_lshlrev_b32 v8, 2, v0
    """)
    for kk in range(64):
        k(f"ds_read_b32 v{ACC+(kk%16)}, v8 offset:{A_LDS_A+768*kk}")
        if kk % 16 == 15:
            k("s_waitcnt lgkmcnt(0)")
            if kk == 15:
                k(f"v_mov_b32 v9, v{ACC}")
                rng = range(1, 16)
            else:
                rng = range(16)
            for a in rng:
                k(f"v_add_f32 v9, v9, v{ACC+a}")
    k(f"""
    v_cvt_pk_bf16_f32 v9, v9, v9
    v_lshlrev_b32 v8, 1, v0
    ds_write_b16 v8, v9 offset:{A_LDS_Q}
    """)
    k.label("L_attn_q_skip")
    k("""
    s_waitcnt lgkmcnt(0)
    s_barrier
    """)
    for j in range(3):
        k(f"""
        v_and_b32 v8, 0xfff, v{2+j}
        ds_read_b128 v[{QC+4*j}:{QC+4*j+3}], v8 offset:{A_LDS_Q}
        """)
    k(f"""
    s_mul_i32 s47, s14, 6144
    s_add_u32 s47, s47, {A_LDS_B}
    v_lshlrev_b32 v8, 2, v1
    v_add_u32 v8, s47, v8
    s_waitcnt lgkmcnt(0)
    """)
    for i in range(24):
        j = i % 3
        r = 10 + (i % 4)
        k(f"""
        s_waitcnt vmcnt({24+23-i})
        v_dot2_f32_bf16 v{r}, v{KD+4*i}, v{QC+4*j}, 0
        v_dot2_f32_bf16 v{r}, v{KD+4*i+1}, v{QC+4*j+1}, v{r}
        v_dot2_f32_bf16 v{r}, v{KD+4*i+2}, v{QC+4*j+2}, v{r}
        v_dot2_f32_bf16 v{r}, v{KD+4*i+3}, v{QC+4*j+3}, v{r}
        s_nop 2
        ds_write_b32 v8, v{r} offset:{256*i}
        """)
    k(f"""
    v_mul_u32_u24 v9, 96, v1
    v_add_u32 v9, s47, v9
    s_waitcnt lgkmcnt(0)
    """)
    for q in range(6):
        k(f"ds_read_b128 v[{KD+4*q}:{KD+4*q+3}], v9 offset:{16*q}")
    k("s_waitcnt lgkmcnt(0)")
    k(f"v_add_f32 v10, v{KD}, v{KD+1}")
    for e in range(2, 24):
        k(f"v_add_f32 v10, v10, v{KD+e}")
    k.bf16r("v10")
    k(f"v_mul_f32 v10, {SCALE}, v10")
    k.bf16r("v10")
    k("v_mov_b32 v12, v10")
    k.allreduce("v_max_f32", "v12", "v13", 48)
    k(f"""
    v_sub_f32 v10, v10, v12
    v_mul_f32 v10, {LOG2E}, v10
    v_exp_f32 v10, v10
    s_nop 0
    v_mov_b32 v13, v10
    """)
    k.allreduce("v_add_f32", "v13", "v11", 48)
    k(f"""
    s_lshl_b32 s47, s14, 8
    s_add_u32 s47, s47, {A_LDS_P}
    v_lshlrev_b32 v8, 2, v1
    v_add_u32 v8, s47, v8
    ds_write_b32 v8, v10
    s_lshl_b32 s48, s14, 3
    v_mov_b32 v8, s48
    ds_write_b64 v8, v[12:13] offset:{A_LDS_M}
    v_add_u32 v8, s47, v5
    v_add_u32 v9, s47, v6
    v_add_u32 v10, s47, v7
    s_waitcnt lgkmcnt(0)
    """)
    for a in range(24):
        k(f"v_mov_b32 v{ACC+a}, 0")
    for g in range(8):
        k(f"""
        ds_read_b32 v11, v8 offset:{32*g}
        ds_read_b32 v12, v9 offset:{32*g}
        ds_read_b32 v13, v10 offset:{32*g}
        """)
        for j in range(3):
            i = 3 * g + j
            k(f"s_waitcnt vmcnt({23-i}) lgkmcnt({2-j})")
            accum(k, WD + 4 * i, f"v{11+j}", j)
    k(f"""
    s_mul_i32 s47, s14, 6144
    v_lshlrev_b32 v8, 5, v1
    v_add_u32 v8, s47, v8
    """)
    for j in range(3):
        k(f"""
        ds_write_b128 v8, v[{ACC+8*j}:{ACC+8*j+3}] offset:{A_LDS_A+2048*j}
        ds_write_b128 v8, v[{ACC+8*j+4}:{ACC+8*j+7}] offset:{A_LDS_A+2048*j+16}
        """)
    k("""
    s_waitcnt lgkmcnt(0)
    s_barrier
    s_cmp_ge_u32 s14, 3
    s_cbranch_scc1 L_attn_end
    v_mov_b32 v8, 0
    """)
    for w in range(4):
        k(f"ds_read_b128 v[{40+4*w}:{43+4*w}], v8 offset:{A_LDS_M+16*w}")
    k("s_waitcnt lgkmcnt(0)")
    k("v_max_f32 v9, v40, v42")
    for w in range(2, 8):
        k(f"v_max_f32 v9, v9, v{40+2*w}")
    for w in range(8):
        k(f"""
        v_sub_f32 v{56+w}, v{40+2*w}, v9
        v_mul_f32 v{56+w}, {LOG2E}, v{56+w}
        v_exp_f32 v{56+w}, v{56+w}
        """)
    k("s_nop 0\nv_mul_f32 v10, v56, v41")
    for w in range(1, 8):
        k(f"v_fmac_f32 v10, v{56+w}, v{41+2*w}")
    k("v_lshlrev_b32 v8, 2, v0\nv_mov_b32 v11, 0")
    for w in range(8):
        for r in range(8):
            k(f"ds_read_b32 v{ACC+r}, v8 offset:{A_LDS_A+6144*w+768*r}")
        k("s_waitcnt lgkmcnt(0)")
        k(f"v_add_f32 v12, v{ACC}, v{ACC+1}")
        for r in range(2, 8):
            k(f"v_add_f32 v12, v12, v{ACC+r}")
        k(f"v_fmac_f32 v11, v{56+w}, v12")
    k(f"""
    s_lshl_b32 s49, s17, 5
    s_add_u32 s49, s49, s15
    s_lshl_b32 s49, s49, 2
    s_add_u32 s49, s49, s18
    s_lshl_b32 s49, s49, 10
    buffer_store_dword v11, v8, s[36:39], s49 offen offset:{WS_P2}
    v_mov_b32 v12, v9
    v_mov_b32 v13, v10
    v_cmp_eq_u32 vcc, 0, v0
    s_and_saveexec_b64 s[50:51], vcc
    s_cbranch_execz L_attn_end
    buffer_store_dwordx2 v[12:13], v8, s[36:39], s49 offen offset:768
    """)
    k.label("L_attn_end")
    k("s_endpgm")
    return k.text()

O_LDS_O = 0
O_LDS_R = 6144
O_LDS = 22528


def gen_oproj():
    k = K()
    WD = 64
    ACC = 112
    k(f"""
    s_cmp_ge_u32 s2, 160
    s_cbranch_scc1 L_op_end
    s_load_dwordx2 s[4:5], s[0:1], 32
    s_load_dwordx2 s[6:7], s[0:1], 88
    s_mul_i32 s14, s2, 3277
    s_lshr_b32 s14, s14, 16          ; ks
    s_mul_i32 s15, s14, 20
    s_sub_u32 s15, s2, s15           ; cg
    s_waitcnt lgkmcnt(0)
    """)
    k.srd(8, 4, 7864320)
    k.srd(20, 6, WS_SIZE)
    k(f"""
    v_and_b32 v1, 3, v0
    v_lshrrev_b32 v2, 2, v0          ; rg
    v_mul_u32_u24 v3, 1280, v2
    v_lshlrev_b32 v1, 4, v1
    v_add_u32 v3, v3, v1
    s_mul_i32 s16, s14, {768*1280}
    s_lshl_b32 s17, s15, 6
    s_add_u32 s16, s16, s17
    """)
    for p in range(12):
        k(f"buffer_load_dwordx4 v[{WD+4*p}:{WD+4*p+3}], v3, s[8:11], s16 offen nt")
        if p < 11:
            k(f"s_add_u32 s16, s16, {64*1280}")
    k(f"""
    v_lshrrev_b32 v4, 5, v0
    v_and_b32 v5, 31, v0
    v_lshrrev_b32 v6, 2, v4          ; b
    v_and_b32 v7, 3, v4              ; hh
    v_lshlrev_b32 v8, 5, v6          ; b*32
    v_add_u32 v8, v8, v7
    s_lshl_b32 s18, s14, 2
    v_add_u32 v8, s18, v8
    v_lshlrev_b32 v8, 12, v8         ; *4 splits * 1024
    v_mul_u32_u24 v9, 24, v5
    v_add_u32 v9, v8, v9             ; + u*24
    """)
    for s in range(4):
        k(f"buffer_load_dwordx2 v[{10+2*s}:{11+2*s}], v8, s[20:23], 0 offen offset:{WS_P2+1024*s+768}")
        for q in range(3):
            k(f"buffer_load_dwordx2 v[{20+6*s+2*q}:{21+6*s+2*q}], v9, s[20:23], 0 offen offset:{WS_P2+1024*s+8*q}")
    k("""
    s_waitcnt vmcnt(0)
    v_max_f32 v44, v10, v12
    v_max_f32 v44, v44, v14
    v_max_f32 v44, v44, v16
    """)
    for s in range(4):
        k(f"""
        v_sub_f32 v{45+s}, v{10+2*s}, v44
        v_mul_f32 v{45+s}, {LOG2E}, v{45+s}
        v_exp_f32 v{45+s}, v{45+s}
        """)
    k("""
    s_nop 0
    v_mul_f32 v49, v45, v11
    v_fmac_f32 v49, v46, v13
    v_fmac_f32 v49, v47, v15
    v_fmac_f32 v49, v48, v17
    v_rcp_f32 v49, v49
    """)
    for d in range(6):
        k(f"""
        v_mul_f32 v{50+d}, v45, v{20+d}
        v_fmac_f32 v{50+d}, v46, v{26+d}
        v_fmac_f32 v{50+d}, v47, v{32+d}
        v_fmac_f32 v{50+d}, v48, v{38+d}
        v_mul_f32 v{50+d}, v{50+d}, v49
        """)
        k.bf16r(f"v{50+d}")
    k(f"""
    v_mul_u32_u24 v8, 768, v6
    v_mul_u32_u24 v9, 192, v7
    v_add_u32 v8, v8, v9
    v_mul_u32_u24 v9, 6, v5
    v_add_u32 v8, v8, v9
    v_lshlrev_b32 v8, 2, v8
    ds_write_b64 v8, v[50:51] offset:{O_LDS_O}
    ds_write_b64 v8, v[52:53] offset:{O_LDS_O+8}
    ds_write_b64 v8, v[54:55] offset:{O_LDS_O+16}
    s_waitcnt lgkmcnt(0)
    s_barrier
    v_lshlrev_b32 v8, 2, v2
    """)
    for a in range(16):
        k(f"v_mov_b32 v{ACC+a}, 0")
    for p in range(12):
        k(f"""
        ds_read_b32 v10, v8 offset:{O_LDS_O+256*p}
        ds_read_b32 v11, v8 offset:{O_LDS_O+3072+256*p}
        s_waitcnt vmcnt({11-p}) lgkmcnt(0)
        """)
        for d in range(4):
            k(f"""
            v_lshlrev_b32 v12, 16, v{WD+4*p+d}
            v_and_b32 v13, 0xffff0000, v{WD+4*p+d}
            v_fmac_f32 v{ACC+2*d}, v10, v12
            v_fmac_f32 v{ACC+2*d+1}, v10, v13
            v_fmac_f32 v{ACC+8+2*d}, v11, v12
            v_fmac_f32 v{ACC+8+2*d+1}, v11, v13
            """)
    k("v_lshlrev_b32 v8, 6, v0")
    for q in range(4):
        k(f"ds_write_b128 v8, v[{ACC+4*q}:{ACC+4*q+3}] offset:{O_LDS_R+16*q}")
    k("""
    s_waitcnt lgkmcnt(0)
    s_barrier
    v_cmp_gt_u32 vcc, 64, v0
    s_and_saveexec_b64 s[24:25], vcc
    s_cbranch_execz L_op_end
    v_lshrrev_b32 v1, 5, v0          ; b
    v_and_b32 v2, 31, v0             ; col
    v_lshrrev_b32 v3, 3, v2          ; chunk
    v_and_b32 v4, 7, v2              ; e
    v_lshlrev_b32 v3, 6, v3
    v_lshlrev_b32 v5, 5, v1
    v_add_u32 v3, v3, v5
    v_lshlrev_b32 v4, 2, v4
    v_add_u32 v3, v3, v4             ; chunk*64 + b*32 + e*4
    v_mov_b32 v6, 0
    """)
    for blk in range(4):
        for r in range(16):
            k(f"ds_read_b32 v{10+r}, v3 offset:{O_LDS_R+256*(16*blk+r)}")
        k("s_waitcnt lgkmcnt(0)")
        for r in range(16):
            k(f"v_add_f32 v6, v6, v{10+r}")
    k(f"""
    v_mul_u32_u24 v7, 640, v1
    v_add_u32 v7, v7, v2
    v_lshlrev_b32 v7, 2, v7
    s_mul_i32 s16, s14, 5120
    s_lshl_b32 s17, s15, 7
    s_add_u32 s16, s16, s17
    s_add_u32 s16, s16, {WS_P3}
    buffer_store_dword v6, v7, s[20:23], s16 offen
    """)
    k.label("L_op_end")
    k("s_endpgm")
    return k.text()

F_LDS_H = 0
F_LDS_R = 5120
F_LDS_GU = 37888
F_LDS_ACT = 38144
F_LDS_D = 38400
F_LDS = 53760


def gen_ffn():
    k = K()
    GW = 64
    UW = 84
    DW = 104
    ACC = 128
    k(f"""
    s_cmp_ge_u32 s2, 96
    s_cbranch_scc1 L_ffn_end
    s_load_dwordx2 s[4:5], s[0:1], 0
    s_load_dwordx4 s[8:11], s[0:1], 48
    s_load_dwordx2 s[6:7], s[0:1], 64
    s_load_dwordx2 s[12:13], s[0:1], 88
    s_waitcnt lgkmcnt(0)
    """)
    k.srd(16, 4, 2560)
    k.srd(20, 8, 1966080)
    k.srd(24, 10, 1966080)
    k.srd(28, 6, 1966080)
    k.srd(32, 12, WS_SIZE)
    k(f"""
    v_and_b32 v1, 1, v0
    v_lshrrev_b32 v2, 1, v0          ; rg
    v_mul_u32_u24 v3, 3072, v2
    v_lshlrev_b32 v1, 4, v1
    v_add_u32 v3, v3, v1
    s_lshl_b32 s36, s2, 5
    """)
    for p in range(5):
        k(f"buffer_load_dwordx4 v[{GW+4*p}:{GW+4*p+3}], v3, s[20:23], s36 offen nt")
        k(f"buffer_load_dwordx4 v[{UW+4*p}:{UW+4*p+3}], v3, s[24:27], s36 offen nt")
        if p < 4:
            k(f"s_add_u32 s36, s36, {128*3072}")
    k(f"""
    v_mul_u32_u24 v4, 205, v0
    v_lshrrev_b32 v4, 14, v4         ; t/80  (205/16384 = 0.012512)
    v_mul_u32_u24 v5, 80, v4
    v_sub_u32 v5, v0, v5             ; cc
    v_mul_u32_u24 v6, 1280, v4
    v_lshlrev_b32 v7, 4, v5
    v_add_u32 v6, v6, v7
    s_mul_i32 s37, s2, {16*1280}
    """)
    for kk in range(6):
        k(f"buffer_load_dwordx4 v[{DW+4*kk}:{DW+4*kk+3}], v6, s[28:31], s37 offen nt")
        if kk < 5:
            k(f"s_add_u32 s37, s37, {3*1280}")
    k(f"""
    v_lshrrev_b32 v8, 7, v0
    v_and_b32 v9, 127, v0
    v_mul_u32_u24 v10, 640, v8
    v_add_u32 v10, v10, v9           ; idx0 = b*640+u
    v_lshlrev_b32 v11, 2, v10        ; *4
    v_lshlrev_b32 v12, 1, v10        ; *2
    """)
    for kk in range(5):
        k(f"buffer_load_ushort v{13+kk}, v12, s[16:19], 0 offen offset:{256*kk}")
    k(f"s_mov_b32 s38, {WS_P3}")
    for ks in range(8):
        for kk in range(5):
            k(f"buffer_load_dword v{20+5*ks+kk}, v11, s[32:35], s38 offen offset:{512*kk}")
        if ks < 7:
            k("s_add_u32 s38, s38, 5120")
    k("s_waitcnt vmcnt(0)")
    for kk in range(5):
        for ks in range(1, 8):
            k(f"v_add_f32 v{20+kk}, v{20+kk}, v{20+5*ks+kk}")
        k.bf16r(f"v{20+kk}")
        k(f"""
        v_lshlrev_b32 v{13+kk}, 16, v{13+kk}
        v_add_f32 v{20+kk}, v{20+kk}, v{13+kk}
        """)
        k.bf16r(f"v{20+kk}")
        k(f"ds_write_b32 v11, v{20+kk} offset:{F_LDS_H+512*kk}")
    k(f"""
    s_cmp_lg_u32 s2, 0
    s_cbranch_scc1 L_ffn_noh
    s_mov_b32 s38, {WS_H}
    """)
    for kk in range(5):
        k(f"buffer_store_dword v{20+kk}, v11, s[32:35], s38 offen offset:{512*kk}")
    k.label("L_ffn_noh")
    k("""
    s_waitcnt lgkmcnt(0)
    s_barrier
    v_and_b32 v13, 63, v0
    v_lshlrev_b32 v13, 2, v13
    """)
    for b in range(2):
        for e in range(10):
            k(f"ds_read_b32 v{20+e}, v13 offset:{F_LDS_H+2560*b+256*e}")
        k("s_waitcnt lgkmcnt(0)")
        k("v_add_f32 v30, v20, v21")
        for e in range(2, 10):
            k(f"v_add_f32 v30, v30, v{20+e}")
        k.allreduce("v_add_f32", "v30", "v31", 40)
        k(f"""
        v_mul_f32 v30, {INV640}, v30
        v_mov_b32 v{40+b}, v30
        """)
        k.bf16r(f"v{40+b}")
        k("""
        v_sub_f32 v31, v20, v30
        v_mul_f32 v32, v31, v31
        """)
        for e in range(1, 10):
            k(f"""
            v_sub_f32 v31, v{20+e}, v30
            v_fmac_f32 v32, v31, v31
            """)
        k.allreduce("v_add_f32", "v32", "v31", 40)
        k(f"v_mul_f32 v32, {INV640}, v32")
        k.bf16r("v32")
        k(f"v_add_f32 v32, {EPS}, v32")
        k.bf16r("v32")
        k("v_sqrt_f32 v32, v32\ns_nop 0")
        k.bf16r("v32")
        k(f"v_rcp_f32 v{42+b}, v32\ns_nop 0")
    for a in range(32):
        k(f"v_mov_b32 v{ACC+a}, 0")
    k("v_lshlrev_b32 v13, 2, v2")
    for p in range(5):
        k(f"""
        ds_read_b32 v20, v13 offset:{F_LDS_H+512*p}
        ds_read_b32 v21, v13 offset:{F_LDS_H+2560+512*p}
        s_waitcnt lgkmcnt(0)
        """)
        for b in range(2):
            k(f"v_sub_f32 v{20+b}, v{20+b}, v{40+b}")
            k.bf16r(f"v{20+b}")
            k(f"v_mul_f32 v{20+b}, v{20+b}, v{42+b}")
            k.bf16r(f"v{20+b}")
        for mat, base in ((0, GW), (1, UW)):
            for d in range(4):
                k(f"""
                v_lshlrev_b32 v22, 16, v{base+4*p+d}
                v_and_b32 v23, 0xffff0000, v{base+4*p+d}
                v_fmac_f32 v{ACC+16*mat+2*d}, v20, v22
                v_fmac_f32 v{ACC+16*mat+2*d+1}, v20, v23
                v_fmac_f32 v{ACC+16*mat+8+2*d}, v21, v22
                v_fmac_f32 v{ACC+16*mat+8+2*d+1}, v21, v23
                """)
    k("v_lshlrev_b32 v13, 7, v0")
    for q in range(8):
        k(f"ds_write_b128 v13, v[{ACC+4*q}:{ACC+4*q+3}] offset:{F_LDS_R+16*q}")
    k(f"""
    s_waitcnt lgkmcnt(0)
    s_barrier
    v_lshrrev_b32 v13, 2, v0         ; o
    v_and_b32 v14, 3, v0             ; q
    v_lshrrev_b32 v15, 5, v13        ; mat
    v_lshrrev_b32 v16, 4, v13
    v_and_b32 v16, 1, v16            ; b
    v_lshrrev_b32 v17, 3, v13
    v_and_b32 v17, 1, v17            ; chunk
    v_and_b32 v18, 7, v13            ; e
    v_lshlrev_b32 v19, 13, v14       ; q*32*256
    v_lshlrev_b32 v20, 7, v17
    v_add_u32 v19, v19, v20
    v_lshlrev_b32 v20, 6, v15
    v_add_u32 v19, v19, v20
    v_lshlrev_b32 v20, 5, v16
    v_add_u32 v19, v19, v20
    v_lshlrev_b32 v20, 2, v18
    v_add_u32 v19, v19, v20
    v_mov_b32 v21, 0
    """)
    for blk in range(2):
        for r in range(16):
            k(f"ds_read_b32 v{22+r}, v19 offset:{F_LDS_R+256*(16*blk+r)}")
        k("s_waitcnt lgkmcnt(0)")
        for r in range(16):
            k(f"v_add_f32 v21, v21, v{22+r}")
    k("""
    s_nop 1
    v_add_f32_dpp v22, v21, v21 quad_perm:[1,0,3,2] row_mask:0xf bank_mask:0xf
    s_nop 1
    v_add_f32_dpp v21, v22, v22 quad_perm:[2,3,0,1] row_mask:0xf bank_mask:0xf
    """)
    k.bf16r("v21")
    k(f"""
    v_lshlrev_b32 v20, 2, v13
    ds_write_b32 v20, v21 offset:{F_LDS_GU}
    s_waitcnt lgkmcnt(0)
    s_barrier
    v_cmp_gt_u32 vcc, 64, v0
    s_and_saveexec_b64 s[40:41], vcc
    s_cbranch_execz L_ffn_act_done
    v_and_b32 v13, 15, v0            ; col
    v_lshrrev_b32 v14, 5, v0         ; b
    v_lshrrev_b32 v15, 4, v0
    v_and_b32 v15, 1, v15
    v_lshlrev_b32 v16, 6, v14
    v_lshlrev_b32 v17, 2, v13
    v_add_u32 v16, v16, v17          ; (b*16+col)*4
    ds_read_b32 v18, v16 offset:{F_LDS_GU}
    ds_read_b32 v19, v16 offset:{F_LDS_GU+128}
    s_waitcnt lgkmcnt(0)
    v_mul_f32 v20, v18, v18
    v_mul_f32 v20, v20, v18
    v_mov_b32 v21, 0x3d372713        ; 0.044715
    v_fma_f32 v20, v20, v21, v18
    v_mul_f32 v20, 0x3f4c422a, v20   ; sqrt(2/pi)
    v_mul_f32 v20, 0x4038aa3b, v20   ; 2*log2e
    v_exp_f32 v20, v20
    s_nop 0
    v_add_f32 v20, 1.0, v20
    v_rcp_f32 v20, v20
    s_nop 0
    v_fma_f32 v20, v20, -2.0, 1.0    ; tanh
    v_add_f32 v20, 1.0, v20
    v_mul_f32 v20, v20, v18
    v_mul_f32 v20, 0.5, v20
    """)
    k.bf16r("v20")
    k("v_mul_f32 v20, v20, v19")
    k.bf16r("v20")
    k(f"""
    v_cmp_eq_u32 vcc, 0, v15
    s_nop 1
    v_cndmask_b32 v20, 0, v20, vcc
    v_lshlrev_b32 v16, 2, v0
    ds_write_b32 v16, v20 offset:{F_LDS_ACT}
    """)
    k.label("L_ffn_act_done")
    k(f"""
    s_mov_b64 exec, -1
    s_waitcnt lgkmcnt(0)
    s_barrier
    v_lshlrev_b32 v13, 2, v4         ; rgrp*4
    """)
    for a in range(16):
        k(f"v_mov_b32 v{ACC+a}, 0")
    for kk in range(6):
        k(f"""
        ds_read_b32 v20, v13 offset:{F_LDS_ACT+12*kk}
        ds_read_b32 v21, v13 offset:{F_LDS_ACT+128+12*kk}
        s_waitcnt lgkmcnt(0)
        """)
        for d in range(4):
            k(f"""
            v_lshlrev_b32 v22, 16, v{DW+4*kk+d}
            v_and_b32 v23, 0xffff0000, v{DW+4*kk+d}
            v_fmac_f32 v{ACC+2*d}, v20, v22
            v_fmac_f32 v{ACC+2*d+1}, v20, v23
            v_fmac_f32 v{ACC+8+2*d}, v21, v22
            v_fmac_f32 v{ACC+8+2*d+1}, v21, v23
            """)
    k(f"""
    v_cmp_gt_u32 vcc, 240, v0
    s_and_saveexec_b64 s[40:41], vcc
    v_lshlrev_b32 v13, 6, v0
    """)
    for q in range(4):
        k(f"ds_write_b128 v13, v[{ACC+4*q}:{ACC+4*q+3}] offset:{F_LDS_D+16*q}")
    k("""
    s_mov_b64 exec, -1
    s_waitcnt lgkmcnt(0)
    s_barrier
    """)
    k(f"s_mul_i32 s38, s2, 5120\ns_add_u32 s38, s38, {WS_P4}")
    for kk in range(5):
        k(f"""
        v_add_u32 v13, {128*kk}, v9
        v_lshrrev_b32 v14, 3, v13
        v_and_b32 v15, 7, v13
        v_lshlrev_b32 v14, 6, v14
        v_lshlrev_b32 v15, 2, v15
        v_add_u32 v14, v14, v15
        v_lshlrev_b32 v15, 5, v8
        v_add_u32 v14, v14, v15
        ds_read_b32 v20, v14 offset:{F_LDS_D}
        ds_read_b32 v21, v14 offset:{F_LDS_D+5120}
        ds_read_b32 v22, v14 offset:{F_LDS_D+10240}
        s_waitcnt lgkmcnt(0)
        v_add_f32 v20, v20, v21
        v_add_f32 v20, v20, v22
        buffer_store_dword v20, v11, s[32:35], s38 offen offset:{512*kk}
        """)
    k.label("L_ffn_end")
    k("s_endpgm")
    return k.text()


def gen_final():
    k = K()
    k(f"""
    s_cmp_ge_u32 s2, 40
    s_cbranch_scc1 L_fin_end
    s_load_dwordx2 s[4:5], s[0:1], 72
    s_load_dwordx2 s[6:7], s[0:1], 88
    s_waitcnt lgkmcnt(0)
    """)
    k.srd(8, 4, 2560)
    k.srd(12, 6, WS_SIZE)
    k(f"""
    v_and_b32 v1, 31, v0             ; o
    v_lshrrev_b32 v2, 5, v0          ; q (0..7)
    s_lshl_b32 s16, s2, 5
    v_add_u32 v3, s16, v1
    v_lshlrev_b32 v4, 2, v3
    v_mul_u32_u24 v5, {12*5120}, v2
    v_add_u32 v5, v5, v4
    s_mov_b32 s17, {WS_P4}
    """)
    for i in range(12):
        k(f"buffer_load_dword v{10+i}, v5, s[12:15], s17 offen")
        if i < 11:
            k("s_add_u32 s17, s17, 5120")
    k(f"""
    s_mov_b32 s18, {WS_H}
    buffer_load_dword v8, v4, s[12:15], s18 offen
    s_waitcnt vmcnt(0)
    """)
    for i in range(1, 12):
        k(f"v_add_f32 v10, v10, v{10+i}")
    k("""
    v_lshlrev_b32 v6, 2, v0
    ds_write_b32 v6, v10
    s_waitcnt lgkmcnt(0)
    s_barrier
    v_cmp_gt_u32 vcc, 32, v0
    s_and_saveexec_b64 s[20:21], vcc
    s_cbranch_execz L_fin_end
    """)
    for q in range(8):
        k(f"ds_read_b32 v{10+q}, v6 offset:{128*q}")
    k("s_waitcnt lgkmcnt(0)")
    for q in range(1, 8):
        k(f"v_add_f32 v10, v10, v{10+q}")
    k.bf16r("v10")
    k("""
    v_add_f32 v10, v10, v8
    v_cvt_pk_bf16_f32 v10, v10, v10
    v_lshlrev_b32 v7, 1, v3
    buffer_store_short v10, v7, s[8:11], 0 offen
    """)
    k.label("L_fin_end")
    k("s_endpgm")
    return k.text()


def main():
    ref = open(REF).read().split("\n")
    hdr = [l for l in ref if l.startswith(";") and "@launch" not in l and "Override launch" not in l and "grid=ceil" not in l]
    kernels = [
        ("attn_kernel", gen_attn(), 256, (256, 512), A_LDS),
        ("oproj_kernel", gen_oproj(), 128, (160, 256), O_LDS),
        ("ffn_kernel", gen_ffn(), 160, (96, 256), F_LDS),
        ("final_kernel", gen_final(), 32, (40, 256), 1024),
    ]
    out = "\n".join(hdr) + "\n"
    for name, _, _, (g, b), lds in kernels:
        out += f"; @launch kernel={name} grid=({g},1,1) block=({b},1,1) lds={lds}\n"
    out += '.amdgcn_target "amdgcn-amd-amdhsa--gfx950"\n.text\n'
    for name, body, _, _, _ in kernels:
        out += head(name) + body
    out += '.section .rodata,"a"\n'
    for name, _, vg, _, _ in kernels:
        out += ".p2align 6\n" + kd(name, vg)
    open(OUT, "w").write(out)


main()
```

```python
import sys
sys.path.insert(0, "gen")
NAME = "sequential_preLN__sliding_block_cached__geglu_ffn__decode"
OUT = "cdna_kernels/%s.s" % NAME
REF = OUT + ".ref"

LOG2E = 0x3fb8aa3b
SCALE = 0x3d93cd3a
EPS = 0x3727c5ac
INV640 = 0x3acccccd

WS_P2 = 0
WS_P3 = 0x40000
WS_P4 = 0x50000
WS_H = 0xD0000
WS_F = 0xE0000
WS_SIZE = 0x100000
SPIN_MAX = 200000


class K:
    def __init__(self):
        self.l = []

    def __call__(self, s):
        for line in s.strip("\n").split("\n"):
            self.l.append("    " + line.strip())

    def label(self, s):
        self.l.append(s + ":")

    def text(self):
        return "\n".join(self.l) + "\n"

    def allreduce(self, op, v, t, sa):
        self(f"""
        s_nop 1
        {op}_dpp {t}, {v}, {v} quad_perm:[1,0,3,2] row_mask:0xf bank_mask:0xf
        s_nop 1
        {op}_dpp {v}, {t}, {t} quad_perm:[2,3,0,1] row_mask:0xf bank_mask:0xf
        s_nop 1
        {op}_dpp {t}, {v}, {v} row_half_mirror row_mask:0xf bank_mask:0xf
        s_nop 1
        {op}_dpp {v}, {t}, {t} row_mirror row_mask:0xf bank_mask:0xf
        s_nop 1
        v_readlane_b32 s{sa}, {v}, 0
        v_readlane_b32 s{sa+1}, {v}, 16
        v_readlane_b32 s{sa+2}, {v}, 32
        v_readlane_b32 s{sa+3}, {v}, 48
        s_nop 1
        v_mov_b32 {v}, s{sa}
        {op} {v}, s{sa+1}, {v}
        {op} {v}, s{sa+2}, {v}
        {op} {v}, s{sa+3}, {v}
        """)

    def reduce8(self, v, t):
        self(f"""
        s_nop 1
        v_add_f32_dpp {t}, {v}, {v} quad_perm:[1,0,3,2] row_mask:0xf bank_mask:0xf
        s_nop 1
        v_add_f32_dpp {v}, {t}, {t} quad_perm:[2,3,0,1] row_mask:0xf bank_mask:0xf
        s_nop 1
        v_add_f32_dpp {t}, {v}, {v} row_half_mirror row_mask:0xf bank_mask:0xf
        s_nop 1
        v_mov_b32 {v}, {t}
        """)

    def bf16r(self, v):
        self(f"""
        v_cvt_pk_bf16_f32 {v}, {v}, {v}
        v_lshlrev_b32 {v}, 16, {v}
        """)

    def srd(self, d, base, size):
        self(f"""
        s_mov_b32 s{d}, s{base}
        s_and_b32 s{d+1}, s{base+1}, 0xffff
        s_mov_b32 s{d+2}, {size}
        s_mov_b32 s{d+3}, 0x00020000
        """)

    def ln_stats(self, vals, vsum, vt, vmean_bf, vrcp, sa):
        self(f"v_add_f32 {vsum}, {vals[0]}, {vals[1]}")
        for v in vals[2:]:
            self(f"v_add_f32 {vsum}, {vsum}, {v}")
        self.allreduce("v_add_f32", vsum, vt, sa)
        self(f"""
        v_mul_f32 {vsum}, {INV640}, {vsum}
        v_mov_b32 {vmean_bf}, {vsum}
        """)
        self.bf16r(vmean_bf)
        self(f"""
        v_sub_f32 {vt}, {vals[0]}, {vsum}
        v_mul_f32 {vrcp}, {vt}, {vt}
        """)
        for v in vals[1:]:
            self(f"""
            v_sub_f32 {vt}, {v}, {vsum}
            v_fmac_f32 {vrcp}, {vt}, {vt}
            """)
        self.allreduce("v_add_f32", vrcp, vt, sa)
        self(f"v_mul_f32 {vrcp}, {INV640}, {vrcp}")
        self.bf16r(vrcp)
        self(f"v_add_f32 {vrcp}, {EPS}, {vrcp}")
        self.bf16r(vrcp)
        self(f"v_sqrt_f32 {vrcp}, {vrcp}\ns_nop 0")
        self.bf16r(vrcp)
        self(f"v_rcp_f32 {vrcp}, {vrcp}\ns_nop 0")

    def poll(self, name, voffs, soff_imm, tmp):
        self(f"s_mov_b32 s40, 0\ns_mov_b32 s41, {soff_imm}")
        self.label(name)
        for i, vo in enumerate(voffs):
            self(f"buffer_load_dword v{tmp+i}, {vo}, s[36:39], s41 offen sc1")
        self("s_waitcnt vmcnt(0)")
        for i in range(1, len(voffs)):
            self(f"v_min_u32 v{tmp}, v{tmp}, v{tmp+i}")
        self(f"""
        v_cmp_ne_u32 vcc, 0, v{tmp}
        s_nop 3
        s_cmp_eq_u64 vcc, -1
        s_cbranch_scc1 {name}_done
        s_add_u32 s40, s40, 1
        s_cmp_ge_u32 s40, {SPIN_MAX}
        s_cbranch_scc1 {name}_done
        s_sleep 1
        s_branch {name}
        """)
        self.label(name + "_done")


A_LDS_Q = 0
A_LDS_M = 512
A_LDS_P = 1024
A_LDS_A = 4096
A_LDS_B = 53248
A_LDS_C = 102400
A_LDS = 122880
T_O = 0
T_H = 0
T_GU = 5120
T_ACT = 5376
T_R = 8192
T_D = 8192


def gen():
    k = K()
    ACC = 16
    KD = 40
    WD = 136
    QC = 232
    PF = 40
    NPF = 9
    k(f"""
    s_cmp_ge_u32 s2, 256
    s_cbranch_scc1 L_end
    s_load_dwordx16 s[76:91], s[0:1], 0
    s_load_dwordx8 s[92:99], s[0:1], 64
    v_lshrrev_b32 v2, 6, v0
    v_and_b32 v1, 63, v0
    s_nop 0
    v_readfirstlane_b32 s14, v2
    s_and_b32 s19, s2, 7
    s_lshr_b32 s16, s2, 3          ; i
    s_and_b32 s17, s16, 3
    s_lshl_b32 s15, s19, 2
    s_add_u32 s15, s15, s17        ; head
    s_lshr_b32 s17, s16, 2
    s_and_b32 s17, s17, 1          ; b
    s_lshr_b32 s18, s16, 3         ; split
    s_waitcnt lgkmcnt(0)
    """)
    k.srd(20, 76, 2560)
    k.srd(24, 78, 201326592)
    k.srd(28, 80, 201326592)
    k.srd(32, 82, 7864320)
    k.srd(36, 98, WS_SIZE)
    k.srd(52, 84, 7864320)
    k.srd(56, 88, 1966080)
    k.srd(60, 90, 1966080)
    k.srd(64, 92, 1966080)
    k.srd(68, 94, 2560)
    k.srd(72, 96, 256)
    k("""
    s_cmp_lt_u32 s14, 4
    s_cselect_b32 s48, s56, s60
    s_cselect_b32 s49, s57, s61
    s_mov_b32 s50, 1966080
    s_mov_b32 s51, 0x00020000
    """)
    k(f"""
    s_cmp_lg_u32 s2, 0
    s_cbranch_scc1 L_noclear
    s_cmp_lg_u32 s14, 7
    s_cbranch_scc1 L_noclear
    v_mov_b32 v4, 0
    v_mov_b32 v5, 0
    v_mov_b32 v6, 0
    v_mov_b32 v7, 0
    v_lshlrev_b32 v8, 4, v1
    s_mov_b32 s40, {WS_F}
    buffer_store_dwordx4 v[4:7], v8, s[36:39], s40 offen sc1
    buffer_store_dwordx4 v[4:7], v8, s[36:39], s40 offen offset:1024 sc1
    buffer_store_dwordx4 v[4:7], v8, s[36:39], s40 offen offset:2048 sc1
    s_waitcnt vmcnt(0)
    v_mov_b32 v4, 1
    v_mov_b32 v8, 0
    v_cmp_eq_u32 vcc, 0, v1
    s_and_saveexec_b64 s[42:43], vcc
    buffer_atomic_add v4, v8, s[72:75], 0 offen
    s_mov_b64 exec, s[42:43]
    s_waitcnt vmcnt(0)
    """)
    k.label("L_noclear")
    for j in range(3):
        k(f"""
        v_add_u32 v8, {64*j}, v1
        v_mul_u32_u24 v9, 683, v8
        v_lshrrev_b32 v9, 14, v9
        v_mul_u32_u24 v10, 24, v9
        v_sub_u32 v10, v8, v10
        v_lshlrev_b32 v{11+j}, 4, v10
        v_mul_u32_u24 v10, 12288, v9
        v_add_u32 v{2+j}, v10, v{11+j}
        v_lshlrev_b32 v{5+j}, 2, v9
        """)
    k(f"""
    s_mul_i32 s40, s17, 1280
    v_lshlrev_b32 v8, 2, v1
    """)
    for kk in range(5):
        k(f"buffer_load_dword v{ACC+kk}, v8, s[20:23], s40 offen offset:{256*kk}")
    k(f"""
    s_mul_i32 s41, s14, {80*12288}
    s_mul_i32 s42, s15, 384
    s_add_u32 s41, s41, s42
    """)
    for g in range(10):
        for j in range(3):
            i = 3 * g + j
            k(f"buffer_load_dwordx4 v[{WD+4*i}:{WD+4*i+3}], v{2+j}, s[32:35], s41 offen")
        if g < 9:
            k(f"s_add_u32 s41, s41, {8*12288}")
    k(f"""
    s_lshl_b32 s43, s17, 5
    s_add_u32 s43, s43, s15
    s_lshl_b32 s43, s43, 13
    s_add_u32 s43, s43, 6144
    s_lshl_b32 s44, s18, 9
    s_add_u32 s43, s43, s44
    s_lshl_b32 s44, s14, 6
    s_add_u32 s43, s43, s44
    s_mul_i32 s43, s43, 384
    s_mov_b32 s44, s43
    v_lshlrev_b32 v9, 4, v1
    """)
    for i in range(24):
        k(f"buffer_load_dwordx4 v[{KD+4*i}:{KD+4*i+3}], v9, s[24:27], s44 offen offset:{1024*(i%4)} nt")
        if i % 4 == 3 and i < 23:
            k("s_add_u32 s44, s44, 4096")
    k("s_waitcnt vmcnt(54)")
    for kk in range(5):
        k(f"""
        v_lshlrev_b32 v{22+2*kk}, 16, v{ACC+kk}
        v_and_b32 v{23+2*kk}, 0xffff0000, v{ACC+kk}
        """)
    k.ln_stats([f"v{22+e}" for e in range(10)], "v32", "v33", "v34", "v35", 44)
    for e in range(10):
        k(f"v_sub_f32 v{22+e}, v{22+e}, v34")
        k.bf16r(f"v{22+e}")
        k(f"v_mul_f32 v{22+e}, v{22+e}, v35")
        k.bf16r(f"v{22+e}")
    k(f"""
    s_mul_i32 s45, s14, 2560
    s_add_u32 s45, s45, {A_LDS_C}
    v_lshlrev_b32 v8, 3, v1
    v_add_u32 v8, s45, v8
    """)
    for kk in range(5):
        k(f"ds_write_b64 v8, v[{22+2*kk}:{23+2*kk}] offset:{512*kk}")
    k(f"""
    s_mul_i32 s46, s14, 320
    s_add_u32 s46, s46, s45
    v_add_u32 v8, s46, v5
    v_add_u32 v9, s46, v6
    v_add_u32 v10, s46, v7
    s_waitcnt lgkmcnt(0)
    """)
    for a in range(24):
        k(f"v_mov_b32 v{ACC+a}, 0")

    def accum(data, sc, j):
        for d in range(4):
            k(f"""
            v_lshlrev_b32 v14, 16, v{data+d}
            v_and_b32 v15, 0xffff0000, v{data+d}
            v_fmac_f32 v{ACC+8*j+2*d}, {sc}, v14
            v_fmac_f32 v{ACC+8*j+2*d+1}, {sc}, v15
            """)
    for g in range(10):
        k(f"""
        ds_read_b32 v11, v8 offset:{32*g}
        ds_read_b32 v12, v9 offset:{32*g}
        ds_read_b32 v13, v10 offset:{32*g}
        """)
        for j in range(3):
            i = 3 * g + j
            k(f"s_waitcnt vmcnt({54-1-i}) lgkmcnt({2-j})")
            accum(WD + 4 * i, f"v{11+j}", j)
    k("s_mov_b32 s44, s43\nv_lshlrev_b32 v14, 4, v1")
    for i in range(24):
        k(f"buffer_load_dwordx4 v[{WD+4*i}:{WD+4*i+3}], v14, s[28:31], s44 offen offset:{1024*(i%4)} nt")
        if i % 4 == 3 and i < 23:
            k("s_add_u32 s44, s44, 4096")
    k(f"""
    s_mul_i32 s47, s14, 6144
    v_lshlrev_b32 v8, 5, v1
    v_add_u32 v8, s47, v8
    """)
    for j in range(3):
        k(f"""
        ds_write_b128 v8, v[{ACC+8*j}:{ACC+8*j+3}] offset:{A_LDS_A+2048*j}
        ds_write_b128 v8, v[{ACC+8*j+4}:{ACC+8*j+7}] offset:{A_LDS_A+2048*j+16}
        """)
    k("""
    s_waitcnt lgkmcnt(0)
    s_barrier
    s_cmp_ge_u32 s14, 3
    s_cbranch_scc1 L_q_skip
    v_lshlrev_b32 v8, 2, v0
    """)
    for kk in range(64):
        k(f"ds_read_b32 v{ACC+(kk%16)}, v8 offset:{A_LDS_A+768*kk}")
        if kk % 16 == 15:
            k("s_waitcnt lgkmcnt(0)")
            if kk == 15:
                k(f"v_mov_b32 v9, v{ACC}")
                rng = range(1, 16)
            else:
                rng = range(16)
            for a in rng:
                k(f"v_add_f32 v9, v9, v{ACC+a}")
    k(f"""
    v_cvt_pk_bf16_f32 v9, v9, v9
    v_lshlrev_b32 v8, 1, v0
    ds_write_b16 v8, v9 offset:{A_LDS_Q}
    """)
    k.label("L_q_skip")
    k("""
    s_waitcnt lgkmcnt(0)
    s_barrier
    """)
    for j in range(3):
        k(f"""
        v_and_b32 v8, 0xfff, v{2+j}
        ds_read_b128 v[{QC+4*j}:{QC+4*j+3}], v8 offset:{A_LDS_Q}
        """)
    k(f"""
    s_mul_i32 s47, s14, 6144
    s_add_u32 s47, s47, {A_LDS_B}
    v_lshlrev_b32 v8, 2, v1
    v_add_u32 v8, s47, v8
    s_waitcnt lgkmcnt(0)
    """)
    for i in range(24):
        j = i % 3
        r = 10 + (i % 4)
        k(f"""
        s_waitcnt vmcnt({24+23-i})
        v_dot2_f32_bf16 v{r}, v{KD+4*i}, v{QC+4*j}, 0
        v_dot2_f32_bf16 v{r}, v{KD+4*i+1}, v{QC+4*j+1}, v{r}
        v_dot2_f32_bf16 v{r}, v{KD+4*i+2}, v{QC+4*j+2}, v{r}
        v_dot2_f32_bf16 v{r}, v{KD+4*i+3}, v{QC+4*j+3}, v{r}
        s_nop 2
        ds_write_b32 v8, v{r} offset:{256*i}
        """)
    k(f"""
    v_mul_u32_u24 v9, 96, v1
    v_add_u32 v9, s47, v9
    s_waitcnt lgkmcnt(0)
    """)
    for q in range(6):
        k(f"ds_read_b128 v[{KD+4*q}:{KD+4*q+3}], v9 offset:{16*q}")
    k("s_waitcnt lgkmcnt(0)")
    k(f"v_add_f32 v10, v{KD}, v{KD+1}")
    for e in range(2, 24):
        k(f"v_add_f32 v10, v10, v{KD+e}")
    k(f"""
    s_cmp_ge_u32 s16, 20
    s_cbranch_scc1 L_pf_ffn
    v_and_b32 v8, 3, v0
    v_lshrrev_b32 v9, 2, v0
    v_mul_u32_u24 v9, 1280, v9
    v_lshlrev_b32 v8, 4, v8
    v_add_u32 v9, v9, v8
    s_mul_i32 s40, s19, {768*1280}
    s_lshl_b32 s41, s16, 6
    s_add_u32 s40, s40, s41
    """)
    for p in range(8):
        k(f"buffer_load_dwordx4 v[{PF+4*p}:{PF+4*p+3}], v9, s[52:55], s40 offen nt")
        if p < 5:
            k(f"s_add_u32 s40, s40, {128*1280}")
    k("s_branch L_pf_done")
    k.label("L_pf_ffn")
    k(f"""
    s_sub_u32 s13, s16, 20
    s_lshl_b32 s13, s13, 3
    s_add_u32 s13, s13, s19
    v_and_b32 v8, 1, v0
    v_lshrrev_b32 v9, 1, v0
    v_and_b32 v9, 127, v9
    v_mul_u32_u24 v9, 3072, v9
    v_lshlrev_b32 v8, 4, v8
    v_add_u32 v9, v9, v8
    s_lshl_b32 s40, s13, 5
    """)
    for p in range(5):
        k(f"buffer_load_dwordx4 v[{PF+4*p}:{PF+4*p+3}], v9, s[48:51], s40 offen nt")
        if p < 4:
            k(f"s_add_u32 s40, s40, {128*3072}")
    k(f"""
    v_mul_u32_u24 v8, 205, v0
    v_lshrrev_b32 v8, 14, v8         ; rgrp
    v_mul_u32_u24 v9, 80, v8
    v_sub_u32 v9, v0, v9             ; cc
    v_mul_u32_u24 v8, 1280, v8
    v_lshlrev_b32 v9, 4, v9
    v_add_u32 v9, v9, v8
    s_mul_i32 s40, s13, {16*1280}
    """)
    for kk in range(3):
        k(f"buffer_load_dwordx4 v[{PF+20+4*kk}:{PF+23+4*kk}], v9, s[64:67], s40 offen nt")
        if kk < 2:
            k(f"s_add_u32 s40, s40, {6*1280}")
    k.label("L_pf_done")
    k("""
    v_mov_b32 v8, 0
    buffer_load_dword v72, v8, s[72:75], 0 offen sc1
    """)
    k.bf16r("v10")
    k(f"v_mul_f32 v10, {SCALE}, v10")
    k.bf16r("v10")
    k("v_mov_b32 v12, v10")
    k.allreduce("v_max_f32", "v12", "v13", 44)
    k(f"""
    v_sub_f32 v10, v10, v12
    v_mul_f32 v10, {LOG2E}, v10
    v_exp_f32 v10, v10
    s_nop 0
    v_mov_b32 v13, v10
    """)
    k.allreduce("v_add_f32", "v13", "v11", 44)
    k(f"""
    s_lshl_b32 s47, s14, 8
    s_add_u32 s47, s47, {A_LDS_P}
    v_lshlrev_b32 v8, 2, v1
    v_add_u32 v8, s47, v8
    ds_write_b32 v8, v10
    s_lshl_b32 s40, s14, 3
    v_mov_b32 v8, s40
    ds_write_b64 v8, v[12:13] offset:{A_LDS_M}
    v_add_u32 v8, s47, v5
    v_add_u32 v9, s47, v6
    v_add_u32 v10, s47, v7
    s_waitcnt lgkmcnt(0)
    """)
    for a in range(24):
        k(f"v_mov_b32 v{ACC+a}, 0")
    for g in range(8):
        k(f"""
        ds_read_b32 v11, v8 offset:{32*g}
        ds_read_b32 v12, v9 offset:{32*g}
        ds_read_b32 v13, v10 offset:{32*g}
        """)
        for j in range(3):
            i = 3 * g + j
            k(f"s_waitcnt vmcnt({23-i+NPF}) lgkmcnt({2-j})")
            accum(WD + 4 * i, f"v{11+j}", j)
    k(f"""
    s_mul_i32 s47, s14, 6144
    v_lshlrev_b32 v8, 5, v1
    v_add_u32 v8, s47, v8
    """)
    for j in range(3):
        k(f"""
        ds_write_b128 v8, v[{ACC+8*j}:{ACC+8*j+3}] offset:{A_LDS_A+2048*j}
        ds_write_b128 v8, v[{ACC+8*j+4}:{ACC+8*j+7}] offset:{A_LDS_A+2048*j+16}
        """)
    k("""
    s_waitcnt lgkmcnt(0)
    s_barrier
    s_cmp_ge_u32 s14, 3
    s_cbranch_scc1 L_att_fin
    v_mov_b32 v8, 0
    """)
    ML = 80
    for w in range(4):
        k(f"ds_read_b128 v[{ML+4*w}:{ML+3+4*w}], v8 offset:{A_LDS_M+16*w}")
    k("s_waitcnt lgkmcnt(0)")
    k(f"v_max_f32 v9, v{ML}, v{ML+2}")
    for w in range(2, 8):
        k(f"v_max_f32 v9, v9, v{ML+2*w}")
    for w in range(8):
        k(f"""
        v_sub_f32 v{96+w}, v{ML+2*w}, v9
        v_mul_f32 v{96+w}, {LOG2E}, v{96+w}
        v_exp_f32 v{96+w}, v{96+w}
        """)
    k(f"s_nop 0\nv_mul_f32 v10, v96, v{ML+1}")
    for w in range(1, 8):
        k(f"v_fmac_f32 v10, v{96+w}, v{ML+1+2*w}")
    k("v_lshlrev_b32 v8, 2, v0\nv_mov_b32 v11, 0")
    for w in range(8):
        for r in range(8):
            k(f"ds_read_b32 v{ACC+r}, v8 offset:{A_LDS_A+6144*w+768*r}")
        k("s_waitcnt lgkmcnt(0)")
        k(f"v_add_f32 v12, v{ACC}, v{ACC+1}")
        for r in range(2, 8):
            k(f"v_add_f32 v12, v12, v{ACC+r}")
        k(f"v_fmac_f32 v11, v{96+w}, v12")
    k(f"""
    s_lshl_b32 s40, s17, 5
    s_add_u32 s40, s40, s15
    s_lshl_b32 s40, s40, 2
    s_add_u32 s40, s40, s18
    s_lshl_b32 s40, s40, 10
    buffer_store_dword v11, v8, s[36:39], s40 offen offset:{WS_P2} sc1
    v_mov_b32 v12, v9
    v_mov_b32 v13, v10
    v_cmp_eq_u32 vcc, 0, v0
    s_and_saveexec_b64 s[42:43], vcc
    buffer_store_dwordx2 v[12:13], v8, s[36:39], s40 offen offset:768 sc1
    s_mov_b64 exec, s[42:43]
    """)
    k.label("L_att_fin")
    k("""
    s_waitcnt vmcnt(0)
    s_barrier
    s_cmp_lg_u32 s14, 0
    s_cbranch_scc1 L_flagA_done
    """)
    k(f"""
    s_mov_b32 s40, 0
    v_mov_b32 v8, 0
    """)
    k.label("L_chk")
    k(f"""
    v_readfirstlane_b32 s41, v72
    s_nop 3
    s_cmp_ge_u32 s41, 1
    s_cbranch_scc1 L_chk_done
    s_add_u32 s40, s40, 1
    s_cmp_ge_u32 s40, {SPIN_MAX}
    s_cbranch_scc1 L_chk_done
    s_sleep 1
    buffer_load_dword v72, v8, s[72:75], 0 offen sc1
    s_waitcnt vmcnt(0)
    s_branch L_chk
    """)
    k.label("L_chk_done")
    k(f"""
    s_lshl_b32 s40, s19, 5
    s_add_u32 s40, s40, s16
    s_lshl_b32 s40, s40, 2
    s_add_u32 s40, s40, {WS_F}
    v_mov_b32 v9, 1
    v_cmp_eq_u32 vcc, 0, v1
    s_and_saveexec_b64 s[42:43], vcc
    buffer_store_dword v9, v8, s[36:39], s40 offen sc1
    s_mov_b64 exec, s[42:43]
    """)
    k.label("L_flagA_done")
    k("""
    s_cmp_ge_u32 s16, 20
    s_cbranch_scc1 L_ffn
    """)
    k("""
    s_cmp_lg_u32 s14, 0
    s_cbranch_scc1 L_p2_wait
    v_and_b32 v8, 31, v1
    s_lshl_b32 s42, s19, 7
    v_lshlrev_b32 v8, 2, v8
    v_add_u32 v8, s42, v8
    """)
    k.poll("L_pollA", ["v8"], WS_F, 9)
    k.label("L_p2_wait")
    k(f"""
    s_barrier
    s_lshr_b32 s40, s14, 2           ; b
    s_and_b32 s41, s14, 3            ; hh
    s_lshl_b32 s42, s40, 5
    s_lshl_b32 s43, s19, 2
    s_add_u32 s42, s42, s43
    s_add_u32 s42, s42, s41
    s_lshl_b32 s42, s42, 12
    v_lshlrev_b32 v8, 2, v1
    v_mov_b32 v9, 0
    """)
    for s in range(4):
        k(f"buffer_load_dwordx2 v[{80+2*s}:{81+2*s}], v9, s[36:39], s42 offen offset:{1024*s+768} sc1")
        for q in range(3):
            k(f"buffer_load_dword v{88+3*s+q}, v8, s[36:39], s42 offen offset:{1024*s+256*q} sc1")
    k("""
    s_waitcnt vmcnt(0)
    v_max_f32 v100, v80, v82
    v_max_f32 v100, v100, v84
    v_max_f32 v100, v100, v86
    """)
    for s in range(4):
        k(f"""
        v_sub_f32 v{101+s}, v{80+2*s}, v100
        v_mul_f32 v{101+s}, {LOG2E}, v{101+s}
        v_exp_f32 v{101+s}, v{101+s}
        """)
    k("""
    s_nop 0
    v_mul_f32 v105, v101, v81
    v_fmac_f32 v105, v102, v83
    v_fmac_f32 v105, v103, v85
    v_fmac_f32 v105, v104, v87
    v_rcp_f32 v105, v105
    """)
    k(f"""
    s_mul_i32 s43, s40, 3072
    s_mul_i32 s44, s41, 768
    s_add_u32 s43, s43, s44
    v_add_u32 v9, s43, v8
    """)
    for q in range(3):
        k(f"""
        v_mul_f32 v{106+q}, v101, v{88+q}
        v_fmac_f32 v{106+q}, v102, v{91+q}
        v_fmac_f32 v{106+q}, v103, v{94+q}
        v_fmac_f32 v{106+q}, v104, v{97+q}
        v_mul_f32 v{106+q}, v{106+q}, v105
        """)
        k.bf16r(f"v{106+q}")
        k(f"ds_write_b32 v9, v{106+q} offset:{T_O+256*q}")
    k("""
    s_waitcnt lgkmcnt(0)
    s_barrier
    v_lshrrev_b32 v8, 2, v0
    v_lshlrev_b32 v8, 2, v8          ; rg*4
    """)
    for a in range(16):
        k(f"v_mov_b32 v{ACC+a}, 0")
    for p in range(6):
        k(f"""
        ds_read_b32 v10, v8 offset:{T_O+512*p}
        ds_read_b32 v11, v8 offset:{T_O+3072+512*p}
        s_waitcnt lgkmcnt(0)
        """)
        for d in range(4):
            k(f"""
            v_lshlrev_b32 v12, 16, v{PF+4*p+d}
            v_and_b32 v13, 0xffff0000, v{PF+4*p+d}
            v_fmac_f32 v{ACC+2*d}, v10, v12
            v_fmac_f32 v{ACC+2*d+1}, v10, v13
            v_fmac_f32 v{ACC+8+2*d}, v11, v12
            v_fmac_f32 v{ACC+8+2*d+1}, v11, v13
            """)
    k("v_lshlrev_b32 v8, 6, v0")
    for q in range(4):
        k(f"ds_write_b128 v8, v[{ACC+4*q}:{ACC+4*q+3}] offset:{T_R+16*q}")
    k(f"""
    s_waitcnt lgkmcnt(0)
    s_barrier
    v_lshrrev_b32 v8, 3, v0          ; o (0..63): b = o>>5, col = o&31
    v_and_b32 v9, 7, v0              ; q
    v_lshrrev_b32 v10, 5, v8         ; b
    v_and_b32 v11, 31, v8            ; col
    v_lshrrev_b32 v12, 3, v11        ; chunk
    v_and_b32 v13, 7, v11            ; e
    v_lshlrev_b32 v14, 12, v9        ; q*4096
    v_lshlrev_b32 v12, 6, v12
    v_add_u32 v14, v14, v12
    v_lshlrev_b32 v12, 5, v10
    v_add_u32 v14, v14, v12
    v_lshlrev_b32 v13, 2, v13
    v_add_u32 v14, v14, v13
    """)
    for r in range(16):
        k(f"ds_read_b32 v{ACC+r}, v14 offset:{T_R+256*r}")
    k("s_waitcnt lgkmcnt(0)")
    for r in range(1, 16):
        k(f"v_add_f32 v{ACC}, v{ACC}, v{ACC+r}")
    k.reduce8(f"v{ACC}", f"v{ACC+1}")
    k(f"""
    v_mul_u32_u24 v12, 640, v10
    v_add_u32 v12, v12, v11
    v_lshlrev_b32 v12, 2, v12
    s_mul_i32 s40, s19, 5120
    s_lshl_b32 s41, s16, 7
    s_add_u32 s40, s40, s41
    s_add_u32 s40, s40, {WS_P3}
    v_cmp_eq_u32 vcc, 0, v9
    s_and_saveexec_b64 s[42:43], vcc
    buffer_store_dword v{ACC}, v12, s[36:39], s40 offen sc1
    s_mov_b64 exec, s[42:43]
    s_waitcnt vmcnt(0)
    s_barrier
    s_cmp_lg_u32 s14, 0
    s_cbranch_scc1 L_flagB_done
    s_lshl_b32 s40, s2, 2
    s_add_u32 s40, s40, {WS_F+1024}
    v_mov_b32 v8, 0
    v_mov_b32 v9, 1
    v_cmp_eq_u32 vcc, 0, v1
    s_and_saveexec_b64 s[42:43], vcc
    buffer_store_dword v9, v8, s[36:39], s40 offen sc1
    s_mov_b64 exec, s[42:43]
    """)
    k.label("L_flagB_done")
    k("""
    s_cmp_ge_u32 s2, 40
    s_cbranch_scc1 L_end
    """)
    k("""
    s_cmp_lg_u32 s14, 0
    s_cbranch_scc1 L_p4_wait
    v_lshlrev_b32 v8, 2, v1
    v_add_u32 v9, 64, v1
    v_min_u32 v9, 95, v9
    v_lshlrev_b32 v9, 2, v9
    """)
    k.poll("L_pollC", ["v8", "v9"], WS_F + 2048, 10)
    k.label("L_p4_wait")
    k(f"""
    s_barrier
    v_and_b32 v8, 31, v0             ; o
    v_lshrrev_b32 v9, 5, v0          ; q 0..15
    s_lshl_b32 s40, s2, 5
    v_add_u32 v10, s40, v8
    v_lshlrev_b32 v11, 2, v10
    v_mul_u32_u24 v12, {6*5120}, v9
    v_add_u32 v12, v12, v11
    s_mov_b32 s41, {WS_P4}
    """)
    for i in range(6):
        k(f"buffer_load_dword v{16+i}, v12, s[36:39], s41 offen sc1")
        if i < 5:
            k("s_add_u32 s41, s41, 5120")
    k(f"""
    s_mov_b32 s41, {WS_H}
    buffer_load_dword v15, v11, s[36:39], s41 offen sc1
    s_waitcnt vmcnt(0)
    """)
    for i in range(1, 6):
        k(f"v_add_f32 v16, v16, v{16+i}")
    k("""
    v_lshlrev_b32 v13, 2, v0
    ds_write_b32 v13, v16
    s_waitcnt lgkmcnt(0)
    s_barrier
    v_cmp_gt_u32 vcc, 32, v0
    s_and_saveexec_b64 s[42:43], vcc
    s_cbranch_execz L_end
    """)
    for q in range(16):
        k(f"ds_read_b32 v{16+q}, v13 offset:{128*q}")
    k("s_waitcnt lgkmcnt(0)")
    for q in range(1, 16):
        k(f"v_add_f32 v16, v16, v{16+q}")
    k.bf16r("v16")
    k("""
    v_add_f32 v16, v16, v15
    v_cvt_pk_bf16_f32 v16, v16, v16
    v_lshlrev_b32 v14, 1, v10
    buffer_store_short v16, v14, s[68:71], 0 offen
    s_branch L_end
    """)
    k.label("L_ffn")
    k("""
    s_cmp_lg_u32 s14, 0
    s_cbranch_scc1 L_p3_wait
    v_lshlrev_b32 v8, 2, v1
    v_add_u32 v9, 64, v1
    v_lshlrev_b32 v9, 2, v9
    v_add_u32 v10, 128, v1
    v_min_u32 v10, 159, v10
    v_lshlrev_b32 v10, 2, v10
    """)
    k.poll("L_pollB", ["v8", "v9", "v10"], WS_F + 1024, 11)
    k.label("L_p3_wait")
    k("s_barrier")
    for kk in range(3):
        k(f"""
        v_add_u32 v14, {512*kk}, v0
        v_min_u32 v14, 1279, v14
        v_lshlrev_b32 v{8+kk}, 2, v14
        v_lshlrev_b32 v14, 1, v14
        buffer_load_ushort v{11+kk}, v14, s[20:23], 0 offen
        """)
    k(f"s_mov_b32 s40, {WS_P3}")
    for ks in range(8):
        for kk in range(3):
            k(f"buffer_load_dword v{80+3*ks+kk}, v{8+kk}, s[36:39], s40 offen sc1")
        if ks < 7:
            k("s_add_u32 s40, s40, 5120")
    k("s_waitcnt vmcnt(0)")
    for kk in range(3):
        for ks in range(1, 8):
            k(f"v_add_f32 v{80+kk}, v{80+kk}, v{80+3*ks+kk}")
        k.bf16r(f"v{80+kk}")
        k(f"""
        v_lshlrev_b32 v{11+kk}, 16, v{11+kk}
        v_add_f32 v{80+kk}, v{80+kk}, v{11+kk}
        """)
        k.bf16r(f"v{80+kk}")
        k(f"ds_write_b32 v{8+kk}, v{80+kk} offset:{T_H}")
    k(f"""
    s_cmp_lg_u32 s13, 0
    s_cbranch_scc1 L_noh
    s_mov_b32 s40, {WS_H}
    """)
    for kk in range(3):
        k(f"buffer_store_dword v{80+kk}, v{8+kk}, s[36:39], s40 offen sc1")
    k.label("L_noh")
    k("""
    s_waitcnt lgkmcnt(0)
    s_barrier
    v_lshlrev_b32 v14, 2, v1
    """)
    for b in range(2):
        for e in range(10):
            k(f"ds_read_b32 v{16+e}, v14 offset:{T_H+2560*b+256*e}")
        k("s_waitcnt lgkmcnt(0)")
        k.ln_stats([f"v{16+e}" for e in range(10)], "v26", "v27", f"v{76+b}", f"v{78+b}", 44)
    for a in range(16):
        k(f"v_mov_b32 v{ACC+a}, 0")
    k("""
    v_lshrrev_b32 v14, 1, v0
    v_and_b32 v14, 127, v14
    v_lshlrev_b32 v14, 2, v14        ; rg*4
    """)
    for p in range(5):
        k(f"""
        ds_read_b32 v32, v14 offset:{T_H+512*p}
        ds_read_b32 v33, v14 offset:{T_H+2560+512*p}
        s_waitcnt lgkmcnt(0)
        """)
        for b in range(2):
            k(f"v_sub_f32 v{32+b}, v{32+b}, v{76+b}")
            k.bf16r(f"v{32+b}")
            k(f"v_mul_f32 v{32+b}, v{32+b}, v{78+b}")
            k.bf16r(f"v{32+b}")
        for d in range(4):
            k(f"""
            v_lshlrev_b32 v34, 16, v{PF+4*p+d}
            v_and_b32 v35, 0xffff0000, v{PF+4*p+d}
            v_fmac_f32 v{ACC+2*d}, v32, v34
            v_fmac_f32 v{ACC+2*d+1}, v32, v35
            v_fmac_f32 v{ACC+8+2*d}, v33, v34
            v_fmac_f32 v{ACC+8+2*d+1}, v33, v35
            """)
    k("v_lshlrev_b32 v14, 6, v0")
    for q in range(4):
        k(f"ds_write_b128 v14, v[{ACC+4*q}:{ACC+4*q+3}] offset:{T_R+16*q}")
    k(f"""
    s_waitcnt lgkmcnt(0)
    s_barrier
    v_lshrrev_b32 v14, 3, v0         ; o
    v_and_b32 v15, 7, v0             ; q
    v_lshrrev_b32 v32, 5, v14        ; mat
    v_lshrrev_b32 v33, 4, v14
    v_and_b32 v33, 1, v33            ; b
    v_lshrrev_b32 v34, 3, v14
    v_and_b32 v34, 1, v34            ; chunk
    v_and_b32 v35, 7, v14            ; e
    v_lshlrev_b32 v36, 11, v15       ; q*16*128
    v_lshlrev_b32 v32, 14, v32
    v_add_u32 v36, v36, v32
    v_lshlrev_b32 v34, 6, v34
    v_add_u32 v36, v36, v34
    v_lshlrev_b32 v33, 5, v33
    v_add_u32 v36, v36, v33
    v_lshlrev_b32 v35, 2, v35
    v_add_u32 v36, v36, v35
    """)
    for r in range(16):
        k(f"ds_read_b32 v{ACC+r}, v36 offset:{T_R+128*r}")
    k("s_waitcnt lgkmcnt(0)")
    for r in range(1, 16):
        k(f"v_add_f32 v{ACC}, v{ACC}, v{ACC+r}")
    k.reduce8(f"v{ACC}", f"v{ACC+1}")
    k.bf16r(f"v{ACC}")
    k(f"""
    v_lshlrev_b32 v32, 2, v14
    ds_write_b32 v32, v{ACC} offset:{T_GU}
    s_waitcnt lgkmcnt(0)
    s_barrier
    s_cmp_lg_u32 s14, 0
    s_cbranch_scc1 L_act_done
    v_and_b32 v13, 15, v0
    v_lshrrev_b32 v14, 5, v0
    v_lshrrev_b32 v15, 4, v0
    v_and_b32 v15, 1, v15
    v_lshlrev_b32 v16, 6, v14
    v_lshlrev_b32 v17, 2, v13
    v_add_u32 v16, v16, v17
    ds_read_b32 v18, v16 offset:{T_GU}
    ds_read_b32 v19, v16 offset:{T_GU+128}
    s_waitcnt lgkmcnt(0)
    v_mul_f32 v20, v18, v18
    v_mul_f32 v20, v20, v18
    v_mov_b32 v21, 0x3d372713
    v_fma_f32 v20, v20, v21, v18
    v_mul_f32 v20, 0x3f4c422a, v20
    v_mul_f32 v20, 0x4038aa3b, v20
    v_exp_f32 v20, v20
    s_nop 0
    v_add_f32 v20, 1.0, v20
    v_rcp_f32 v20, v20
    s_nop 0
    v_fma_f32 v20, v20, -2.0, 1.0
    v_add_f32 v20, 1.0, v20
    v_mul_f32 v20, v20, v18
    v_mul_f32 v20, 0.5, v20
    """)
    k.bf16r("v20")
    k("v_mul_f32 v20, v20, v19")
    k.bf16r("v20")
    k(f"""
    v_cmp_eq_u32 vcc, 0, v15
    s_nop 1
    v_cndmask_b32 v20, 0, v20, vcc
    v_lshlrev_b32 v16, 2, v0
    ds_write_b32 v16, v20 offset:{T_ACT}
    """)
    k.label("L_act_done")
    k(f"""
    s_waitcnt lgkmcnt(0)
    s_barrier
    v_mul_u32_u24 v14, 205, v0
    v_lshrrev_b32 v14, 14, v14       ; rgrp
    v_lshlrev_b32 v14, 2, v14
    """)
    for a in range(16):
        k(f"v_mov_b32 v{ACC+a}, 0")
    for kk in range(3):
        k(f"""
        ds_read_b32 v32, v14 offset:{T_ACT+24*kk}
        ds_read_b32 v33, v14 offset:{T_ACT+128+24*kk}
        s_waitcnt lgkmcnt(0)
        """)
        for d in range(4):
            k(f"""
            v_lshlrev_b32 v34, 16, v{PF+20+4*kk+d}
            v_and_b32 v35, 0xffff0000, v{PF+20+4*kk+d}
            v_fmac_f32 v{ACC+2*d}, v32, v34
            v_fmac_f32 v{ACC+2*d+1}, v32, v35
            v_fmac_f32 v{ACC+8+2*d}, v33, v34
            v_fmac_f32 v{ACC+8+2*d+1}, v33, v35
            """)
    k(f"""
    v_cmp_gt_u32 vcc, 480, v0
    s_and_saveexec_b64 s[42:43], vcc
    v_lshlrev_b32 v14, 6, v0
    """)
    for q in range(4):
        k(f"ds_write_b128 v14, v[{ACC+4*q}:{ACC+4*q+3}] offset:{T_D+16*q}")
    k(f"""
    s_mov_b64 exec, s[42:43]
    s_waitcnt lgkmcnt(0)
    s_barrier
    s_mul_i32 s40, s13, 5120
    s_add_u32 s40, s40, {WS_P4}
    """)
    for kk in range(3):
        k(f"""
        v_lshrrev_b32 v14, 2, v{8+kk}     ; idx
        v_cmp_le_u32 vcc, 640, v14
        s_nop 1
        v_cndmask_b32 v15, 0, 1, vcc      ; b
        v_mul_u32_u24 v32, 640, v15
        v_sub_u32 v14, v14, v32           ; n
        v_lshrrev_b32 v32, 3, v14
        v_and_b32 v33, 7, v14
        v_lshlrev_b32 v32, 6, v32
        v_lshlrev_b32 v33, 2, v33
        v_add_u32 v32, v32, v33
        v_lshlrev_b32 v15, 5, v15
        v_add_u32 v32, v32, v15
        """)
        for r in range(6):
            k(f"ds_read_b32 v{ACC+r}, v32 offset:{T_D+5120*r}")
        k("s_waitcnt lgkmcnt(0)")
        for r in range(1, 6):
            k(f"v_add_f32 v{ACC}, v{ACC}, v{ACC+r}")
        k(f"buffer_store_dword v{ACC}, v{8+kk}, s[36:39], s40 offen sc1")
        k("s_nop 1")
    k(f"""
    s_waitcnt vmcnt(0)
    s_barrier
    s_cmp_lg_u32 s14, 0
    s_cbranch_scc1 L_end
    s_lshl_b32 s40, s13, 2
    s_add_u32 s40, s40, {WS_F+2048}
    v_mov_b32 v8, 0
    v_mov_b32 v9, 1
    v_cmp_eq_u32 vcc, 0, v1
    s_and_saveexec_b64 s[42:43], vcc
    buffer_store_dword v9, v8, s[36:39], s40 offen sc1
    """)
    k.label("L_end")
    k("s_endpgm")
    return k.text()


def main():
    ref = open(REF).read().split("\n")
    hdr = [l for l in ref if l.startswith(";") and "@launch" not in l and "Override launch" not in l and "grid=ceil" not in l]
    name = NAME + "_kernel"
    out = "\n".join(hdr) + "\n"
    out += f"; @launch grid=(256,1,1) block=(512,1,1) lds={A_LDS}\n"
    out += '.amdgcn_target "amdgcn-amd-amdhsa--gfx950"\n.text\n'
    out += f".globl {name}\n.p2align 8\n.type {name},@function\n{name}:\n" + gen()
    out += f""".section .rodata,"a"
.p2align 6
.amdhsa_kernel {name}
  .amdhsa_next_free_vgpr 256
  .amdhsa_next_free_sgpr 102
  .amdhsa_accum_offset 256
  .amdhsa_group_segment_fixed_size 0
  .amdhsa_kernarg_size 96
  .amdhsa_user_sgpr_count 2
  .amdhsa_user_sgpr_kernarg_segment_ptr 1
  .amdhsa_system_sgpr_workgroup_id_x 1
.end_amdhsa_kernel
"""
    open(OUT, "w").write(out)


main()
```

```python
import sys, os
NAME = "sequential_preLN__sliding_block_cached__geglu_ffn__decode"
OUT = "cdna_kernels/%s.s" % NAME
REF = OUT + ".ref"

LOG2E = 0x3fb8aa3b
SCALE = 0x3d93cd3a
EPS = 0x3727c5ac
INV640 = 0x3acccccd

WS_P2 = 0
WS_P3 = 0x40000
WS_P4 = 0x50000
WS_H = 0xD0000
WS_Q = 0x100000
WS_T = 0x170000
WS_SIZE = 0x180000
SPIN_MAX = 100000
STAMP = int(os.environ.get("STAMP", "0"))


class K:
    def __init__(self):
        self.l = []

    def __call__(self, s):
        for line in s.strip("\n").split("\n"):
            self.l.append("    " + line.strip())

    def label(self, s):
        self.l.append(s + ":")

    def text(self):
        return "\n".join(self.l) + "\n"

    def allreduce(self, op, v, t, sa):
        self(f"""
        s_nop 1
        {op}_dpp {t}, {v}, {v} quad_perm:[1,0,3,2] row_mask:0xf bank_mask:0xf
        s_nop 1
        {op}_dpp {v}, {t}, {t} quad_perm:[2,3,0,1] row_mask:0xf bank_mask:0xf
        s_nop 1
        {op}_dpp {t}, {v}, {v} row_half_mirror row_mask:0xf bank_mask:0xf
        s_nop 1
        {op}_dpp {v}, {t}, {t} row_mirror row_mask:0xf bank_mask:0xf
        s_nop 1
        v_readlane_b32 s{sa}, {v}, 0
        v_readlane_b32 s{sa+1}, {v}, 16
        v_readlane_b32 s{sa+2}, {v}, 32
        v_readlane_b32 s{sa+3}, {v}, 48
        s_nop 1
        v_mov_b32 {v}, s{sa}
        {op} {v}, s{sa+1}, {v}
        {op} {v}, s{sa+2}, {v}
        {op} {v}, s{sa+3}, {v}
        """)

    def reduce8(self, v, t):
        self(f"""
        s_nop 1
        v_add_f32_dpp {t}, {v}, {v} quad_perm:[1,0,3,2] row_mask:0xf bank_mask:0xf
        s_nop 1
        v_add_f32_dpp {v}, {t}, {t} quad_perm:[2,3,0,1] row_mask:0xf bank_mask:0xf
        s_nop 1
        v_add_f32_dpp {t}, {v}, {v} row_half_mirror row_mask:0xf bank_mask:0xf
        s_nop 1
        v_mov_b32 {v}, {t}
        """)

    def bf16r(self, v):
        self(f"""
        v_cvt_pk_bf16_f32 {v}, {v}, {v}
        v_lshlrev_b32 {v}, 16, {v}
        """)

    def srd(self, d, base, size):
        self(f"""
        s_mov_b32 s{d}, s{base}
        s_and_b32 s{d+1}, s{base+1}, 0xffff
        s_mov_b32 s{d+2}, {size}
        s_mov_b32 s{d+3}, 0x00020000
        """)

    def ln_stats(self, vals, vsum, vt, vmean_bf, vrcp, sa):
        self(f"v_add_f32 {vsum}, {vals[0]}, {vals[1]}")
        for v in vals[2:]:
            self(f"v_add_f32 {vsum}, {vsum}, {v}")
        self.allreduce("v_add_f32", vsum, vt, sa)
        self(f"""
        v_mul_f32 {vsum}, {INV640}, {vsum}
        v_mov_b32 {vmean_bf}, {vsum}
        """)
        self.bf16r(vmean_bf)
        self(f"""
        v_sub_f32 {vt}, {vals[0]}, {vsum}
        v_mul_f32 {vrcp}, {vt}, {vt}
        """)
        for v in vals[1:]:
            self(f"""
            v_sub_f32 {vt}, {v}, {vsum}
            v_fmac_f32 {vrcp}, {vt}, {vt}
            """)
        self.allreduce("v_add_f32", vrcp, vt, sa)
        self(f"v_mul_f32 {vrcp}, {INV640}, {vrcp}")
        self.bf16r(vrcp)
        self(f"v_add_f32 {vrcp}, {EPS}, {vrcp}")
        self.bf16r(vrcp)
        self(f"v_sqrt_f32 {vrcp}, {vrcp}\ns_nop 0")
        self.bf16r(vrcp)
        self(f"v_rcp_f32 {vrcp}, {vrcp}\ns_nop 0")

    def stamp(self, i):
        if STAMP:
            self(f"""
            s_memrealtime s[100:101]
            s_waitcnt lgkmcnt(0)
            s_mov_b32 s{3+i}, s100
            """)

    def poll_data(self, name, emit_loads, regs, tmp, sleep=2):
        self("s_mov_b32 s47, 0")
        self.label(name)
        emit_loads()
        self("s_waitcnt vmcnt(0)")
        self(f"v_max_u32 {tmp}, {regs[0]}, {regs[1]}")
        for r in regs[2:]:
            self(f"v_max_u32 {tmp}, {tmp}, {r}")
        self(f"""
        v_cmp_eq_u32 vcc, -1, {tmp}
        s_nop 3
        s_cmp_eq_u64 vcc, 0
        s_cbranch_scc1 {name}_done
        s_add_u32 s47, s47, 1
        s_cmp_ge_u32 s47, {SPIN_MAX}
        s_cbranch_scc1 {name}_done
        s_sleep {sleep}
        s_branch {name}
        """)
        self.label(name + "_done")


A_LDS_Q = 0
A_LDS_M = 512
A_LDS_P = 1024
A_LDS_A = 4096
A_LDS_B = 53248
A_LDS_C = 102400
A_LDS = 122880
T_O = 0
T_H = 0
T_GU = 5120
T_ACT = 5376
T_R = 8192
T_D = 8192


def gen():
    k = K()
    ACC = 16
    KD = 40
    VD = 136
    WQ = 232
    QC = 232
    PF = 40
    NPF = 0
    DEPTH = 8
    k(f"""
    s_cmp_ge_u32 s2, 256
    s_cbranch_scc1 L_end
    s_load_dwordx16 s[76:91], s[0:1], 0
    s_load_dwordx8 s[92:99], s[0:1], 64
    v_lshrrev_b32 v2, 6, v0
    v_and_b32 v1, 63, v0
    s_nop 0
    v_readfirstlane_b32 s14, v2
    s_and_b32 s19, s2, 7
    s_lshr_b32 s16, s2, 3          ; i
    s_and_b32 s17, s16, 3
    s_lshl_b32 s15, s19, 2
    s_add_u32 s15, s15, s17        ; head
    s_lshr_b32 s17, s16, 2
    s_and_b32 s17, s17, 1          ; b
    s_lshr_b32 s18, s16, 3         ; split
    s_sub_u32 s13, s16, 20
    s_lshl_b32 s13, s13, 3
    s_add_u32 s13, s13, s19
    s_waitcnt lgkmcnt(0)
    """)
    if STAMP:
        for i in range(10):
            k(f"s_mov_b32 s{3+i}, 0")
    k.stamp(0)
    k.srd(20, 76, 2560)
    k.srd(24, 78, 201326592)
    k.srd(28, 80, 201326592)
    k.srd(32, 82, 7864320)
    k.srd(36, 98, WS_SIZE)
    k.srd(52, 84, 7864320)
    k.srd(56, 88, 1966080)
    k.srd(60, 90, 1966080)
    k.srd(64, 92, 1966080)
    k.srd(68, 94, 2560)
    k.srd(72, 96, 256)
    k("""
    s_cmp_lt_u32 s14, 4
    s_cselect_b32 s48, s56, s60
    s_cselect_b32 s49, s57, s61
    s_mov_b32 s50, 1966080
    s_mov_b32 s51, 0x00020000
    """)
    k(f"""
    v_mov_b32 v4, -1
    v_mov_b32 v5, -1
    v_mov_b32 v6, -1
    v_mov_b32 v7, -1
    v_lshlrev_b32 v8, 4, v1          ; lane*16
    s_lshl_b32 s42, s17, 5
    s_add_u32 s42, s42, s15
    s_lshl_b32 s42, s42, 2
    s_add_u32 s42, s42, s18
    s_lshl_b32 s42, s42, 10
    s_lshr_b32 s43, s16, 2           ; ksq
    s_mul_i32 s43, s43, {2*6144*4}
    s_mul_i32 s44, s15, 768
    s_add_u32 s43, s43, s44
    s_add_u32 s43, s43, {WS_Q}
    s_mov_b32 s40, s42
    s_mov_b32 s41, 64
    s_cmp_eq_u32 s14, 0
    s_cbranch_scc1 L_clr_go
    s_mov_b32 s40, s43
    s_mov_b32 s41, 48
    s_cmp_eq_u32 s14, 1
    s_cbranch_scc1 L_clr_go
    s_add_u32 s40, s43, 24576
    s_cmp_eq_u32 s14, 2
    s_cbranch_scc1 L_clr_go
    s_cmp_ge_u32 s16, 20
    s_cbranch_scc1 L_clr_ffn
    s_mov_b32 s41, 0
    s_cmp_ge_u32 s14, 5
    s_cbranch_scc1 L_clr_go
    s_mul_i32 s40, s19, 5120
    s_lshl_b32 s44, s16, 7
    s_add_u32 s40, s40, s44
    s_add_u32 s40, s40, {WS_P3}
    s_sub_u32 s44, s14, 3
    s_mul_i32 s44, s44, 2560
    s_add_u32 s40, s40, s44
    s_mov_b32 s41, 8
    s_branch L_clr_go
    """)
    k.label("L_clr_ffn")
    k(f"""
    s_mul_i32 s40, s13, 5120
    s_sub_u32 s44, s14, 3
    s_lshl_b32 s44, s44, 10
    s_add_u32 s40, s40, s44
    s_add_u32 s40, s40, {WS_P4}
    s_mov_b32 s41, 64
    s_cmp_lg_u32 s13, 0
    s_cbranch_scc1 L_clr_go
    s_add_u32 s45, s44, {WS_H}
    buffer_store_dwordx4 v[4:7], v8, s[36:39], s45 offen sc1
    """)
    k.label("L_clr_go")
    k("""
    v_cmp_gt_u32 vcc, s41, v1
    s_and_saveexec_b64 s[44:45], vcc
    s_cbranch_execz L_clr_skip
    buffer_store_dwordx4 v[4:7], v8, s[36:39], s40 offen sc1
    """)
    k.label("L_clr_skip")
    k("s_mov_b64 exec, s[44:45]")
    for j in range(3):
        k(f"""
        v_add_u32 v8, {64*j}, v1
        v_mul_u32_u24 v9, 683, v8
        v_lshrrev_b32 v9, 14, v9
        v_mul_u32_u24 v10, 24, v9
        v_sub_u32 v10, v8, v10
        v_lshlrev_b32 v{2+j}, 4, v10
        v_lshlrev_b32 v{5+j}, 2, v9
        """)
    k("v_lshlrev_b32 v8, 2, v1")
    for b in range(2):
        for kk in range(5):
            k(f"buffer_load_dword v{16+5*b+kk}, v8, s[20:23], 0 offen offset:{1280*b+256*kk}")
    k(f"""
    v_mul_u32_u24 v9, 683, v0
    v_lshrrev_b32 v9, 14, v9
    v_mul_u32_u24 v10, 24, v9
    v_sub_u32 v10, v0, v10           ; cc
    v_min_u32 v11, 19, v9
    v_mul_u32_u24 v12, 12288, v11
    v_lshlrev_b32 v10, 4, v10
    v_add_u32 v12, v12, v10
    s_lshr_b32 s40, s16, 2
    s_mul_i32 s40, s40, {80*12288}
    s_mul_i32 s41, s15, 384
    s_add_u32 s40, s40, s41
    """)
    for p in range(4):
        k(f"buffer_load_dwordx4 v[{WQ+4*p}:{WQ+4*p+3}], v12, s[32:35], s40 offen")
        if p < 3:
            k(f"s_add_u32 s40, s40, {20*12288}")
    k(f"""
    s_barrier
    s_lshl_b32 s43, s17, 5
    s_add_u32 s43, s43, s15
    s_lshl_b32 s43, s43, 13
    s_add_u32 s43, s43, 6144
    s_lshl_b32 s44, s18, 9
    s_add_u32 s43, s43, s44
    s_lshl_b32 s44, s14, 6
    s_add_u32 s43, s43, s44
    s_mul_i32 s43, s43, 384
    v_lshlrev_b32 v249, 4, v1
    """)
    state = {"n": 0}

    def issue(cnt, wait=True):
        for _ in range(cnt):
            n = state["n"]
            if n >= 48:
                return
            isv = n >= 24
            i = n - 24 if isv else n
            base = VD if isv else KD
            srd = "s[28:31]" if isv else "s[24:27]"
            if i % 4 == 0:
                k(f"s_add_u32 s99, s43, {1024*i}")
            if wait:
                k(f"s_waitcnt vmcnt({DEPTH-1})")
            k(f"buffer_load_dwordx4 v[{base+4*i}:{base+4*i+3}], v249, {srd}, s99 offen offset:{1024*(i%4)} nt")
            state["n"] = n + 1
    issue(DEPTH, wait=False)
    k(f"s_waitcnt vmcnt({DEPTH})")
    k.stamp(1)
    k(f"v_lshlrev_b32 v8, 3, v1\nv_add_u32 v8, {A_LDS_C}, v8")
    for b in range(2):
        X = 136 + 10 * b
        for kk in range(5):
            k(f"""
            v_lshlrev_b32 v{X+2*kk}, 16, v{16+5*b+kk}
            v_and_b32 v{X+1+2*kk}, 0xffff0000, v{16+5*b+kk}
            """)
        k.ln_stats([f"v{X+e}" for e in range(10)], "v160", "v161", "v162", "v163", 44)
        for e in range(10):
            k(f"v_sub_f32 v{X+e}, v{X+e}, v162")
            k.bf16r(f"v{X+e}")
            k(f"v_mul_f32 v{X+e}, v{X+e}, v163")
            k.bf16r(f"v{X+e}")
        for kk in range(5):
            k(f"ds_write_b64 v8, v[{X+2*kk}:{X+1+2*kk}] offset:{2560*b+512*kk}")
        issue(4)
    k(f"""
    s_lshr_b32 s40, s16, 2
    s_mul_i32 s40, s40, 320
    s_add_u32 s40, s40, {A_LDS_C}
    v_lshlrev_b32 v8, 2, v11
    v_add_u32 v8, s40, v8
    s_waitcnt lgkmcnt(0)
    """)
    for a in range(16):
        k(f"v_mov_b32 v{ACC+a}, 0")
    for p in range(4):
        k(f"""
        ds_read_b32 v12, v8 offset:{80*p}
        ds_read_b32 v13, v8 offset:{2560+80*p}
        s_waitcnt lgkmcnt(0)
        """)
        for d in range(4):
            k(f"""
            v_lshlrev_b32 v14, 16, v{WQ+4*p+d}
            v_and_b32 v15, 0xffff0000, v{WQ+4*p+d}
            v_fmac_f32 v{ACC+2*d}, v12, v14
            v_fmac_f32 v{ACC+2*d+1}, v12, v15
            v_fmac_f32 v{ACC+8+2*d}, v13, v14
            v_fmac_f32 v{ACC+8+2*d+1}, v13, v15
            """)
    k(f"""
    v_cmp_gt_u32 vcc, 480, v0
    s_and_saveexec_b64 s[44:45], vcc
    v_lshlrev_b32 v8, 6, v0
    """)
    for q in range(4):
        k(f"ds_write_b128 v8, v[{ACC+4*q}:{ACC+4*q+3}] offset:{A_LDS_A+16*q}")
    k("s_mov_b64 exec, s[44:45]")
    issue(4)
    k(f"""
    s_waitcnt lgkmcnt(0)
    s_barrier
    s_cmp_lg_u32 s14, 0
    s_cbranch_scc1 L_noadd
    v_mov_b32 v8, 1
    s_lshl_b32 s40, s19, 5
    v_mov_b32 v9, s40
    v_cmp_eq_u32 vcc, 0, v1
    s_and_saveexec_b64 s[44:45], vcc
    buffer_atomic_add v8, v9, s[72:75], 0 offen
    s_mov_b64 exec, s[44:45]
    """)
    k.label("L_noadd")
    k(f"""
    s_cmp_ge_u32 s14, 6
    s_cbranch_scc1 L_qp_skip
    ; t<384: b = t/192, d = t%192
    v_cmp_le_u32 vcc, 192, v0
    s_nop 1
    v_cndmask_b32 v8, 0, 1, vcc      ; b
    v_mul_u32_u24 v9, 192, v8
    v_sub_u32 v9, v0, v9             ; d
    v_lshrrev_b32 v10, 3, v9
    v_and_b32 v11, 7, v9
    v_lshlrev_b32 v10, 6, v10
    v_lshlrev_b32 v11, 2, v11
    v_add_u32 v10, v10, v11
    v_lshlrev_b32 v11, 5, v8
    v_add_u32 v10, v10, v11
    """)
    for rr in range(20):
        k(f"ds_read_b32 v{ACC+rr}, v10 offset:{A_LDS_A+1536*rr}")
    k("s_waitcnt lgkmcnt(0)")
    for rr in range(1, 20):
        k(f"v_add_f32 v{ACC}, v{ACC}, v{ACC+rr}")
    k(f"""
    v_mul_u32_u24 v11, 24576, v8
    v_lshlrev_b32 v9, 2, v9
    v_add_u32 v11, v11, v9
    s_lshr_b32 s40, s16, 2
    s_mul_i32 s40, s40, {2*6144*4}
    s_mul_i32 s41, s15, 768
    s_add_u32 s40, s40, s41
    s_add_u32 s40, s40, {WS_Q}
    buffer_store_dword v{ACC}, v11, s[36:39], s40 offen sc1
    """)
    k.label("L_qp_skip")
    k.stamp(2)
    issue(4)
    issue(4)
    k(f"""
    v_and_b32 v8, 7, v1
    v_lshlrev_b32 v8, 5, v8
    buffer_load_dword v248, v8, s[72:75], 0 offen sc1
    s_cmp_ge_u32 s14, 3
    s_cbranch_scc1 L_ql_skip
    v_lshlrev_b32 v8, 2, v0
    s_mul_i32 s40, s17, 24576
    s_mul_i32 s41, s15, 768
    s_add_u32 s40, s40, s41
    s_add_u32 s40, s40, {WS_Q}
    """)
    for ks in range(8):
        k(f"buffer_load_dword v{ACC+ks}, v8, s[36:39], s40 offen sc1")
        if ks < 7:
            k(f"s_add_u32 s40, s40, {2*6144*4}")
    k.label("L_ql_skip")
    issue(8)
    k(f"""
    s_waitcnt vmcnt(8)
    s_mov_b32 s47, 0
    """)
    k.label("L_chk")
    k(f"""
    s_nop 1
    v_add_u32_dpp v9, v248, v248 quad_perm:[1,0,3,2] row_mask:0xf bank_mask:0xf
    s_nop 1
    v_add_u32_dpp v10, v9, v9 quad_perm:[2,3,0,1] row_mask:0xf bank_mask:0xf
    s_nop 1
    v_add_u32_dpp v9, v10, v10 row_half_mirror row_mask:0xf bank_mask:0xf
    s_nop 1
    v_readfirstlane_b32 s41, v9
    s_nop 3
    s_cmp_ge_u32 s41, 256
    s_cbranch_scc1 L_chk_done
    s_add_u32 s47, s47, 1
    s_cmp_ge_u32 s47, {SPIN_MAX}
    s_cbranch_scc1 L_chk_done
    s_sleep 2
    v_and_b32 v8, 7, v1
    v_lshlrev_b32 v8, 5, v8
    buffer_load_dword v248, v8, s[72:75], 0 offen sc1
    s_waitcnt vmcnt(0)
    s_branch L_chk
    """)
    k.label("L_chk_done")
    k("""
    s_cmp_ge_u32 s14, 3
    s_cbranch_scc1 L_q_skip
    """)
    k(f"v_max_u32 v9, v{ACC}, v{ACC+1}")
    for ks in range(2, 8):
        k(f"v_max_u32 v9, v9, v{ACC+ks}")
    k("""
    v_cmp_eq_u32 vcc, -1, v9
    s_nop 3
    s_cmp_eq_u64 vcc, 0
    s_cbranch_scc1 L_q_ok
    """)
    def qloads():
        k(f"""
        v_lshlrev_b32 v8, 2, v0
        s_mul_i32 s40, s17, 24576
        s_mul_i32 s41, s15, 768
        s_add_u32 s40, s40, s41
        s_add_u32 s40, s40, {WS_Q}
        """)
        for ks in range(8):
            k(f"buffer_load_dword v{ACC+ks}, v8, s[36:39], s40 offen sc1")
            if ks < 7:
                k(f"s_add_u32 s40, s40, {2*6144*4}")
    k.poll_data("L_pollq", qloads, [f"v{ACC+i}" for i in range(8)], "v9")
    k.label("L_q_ok")
    for ks in range(1, 8):
        k(f"v_add_f32 v{ACC}, v{ACC}, v{ACC+ks}")
    k(f"""
    v_cvt_pk_bf16_f32 v9, v{ACC}, v{ACC}
    v_lshlrev_b32 v8, 1, v0
    ds_write_b16 v8, v9 offset:{A_LDS_Q}
    """)
    k.label("L_q_skip")
    k("""
    s_waitcnt lgkmcnt(0)
    s_barrier
    """)
    for j in range(3):
        k(f"ds_read_b128 v[{QC+4*j}:{QC+4*j+3}], v{2+j} offset:{A_LDS_Q}")
    k(f"""
    s_mul_i32 s47, s14, 6144
    s_add_u32 s47, s47, {A_LDS_B}
    v_lshlrev_b32 v8, 2, v1
    v_add_u32 v8, s47, v8
    s_waitcnt lgkmcnt(0)
    """)
    for i in range(24):
        j = i % 3
        r = 10 + (i % 4)
        k(f"""
        v_dot2_f32_bf16 v{r}, v{KD+4*i}, v{QC+4*j}, 0
        v_dot2_f32_bf16 v{r}, v{KD+4*i+1}, v{QC+4*j+1}, v{r}
        v_dot2_f32_bf16 v{r}, v{KD+4*i+2}, v{QC+4*j+2}, v{r}
        v_dot2_f32_bf16 v{r}, v{KD+4*i+3}, v{QC+4*j+3}, v{r}
        s_nop 2
        ds_write_b32 v8, v{r} offset:{256*i}
        """)
        if i % 2 == 1:
            issue(1)
    k(f"""
    v_mul_u32_u24 v9, 96, v1
    v_add_u32 v9, s47, v9
    s_waitcnt lgkmcnt(0)
    """)
    for q in range(6):
        k(f"ds_read_b128 v[{KD+4*q}:{KD+4*q+3}], v9 offset:{16*q}")
    k("s_waitcnt lgkmcnt(0)")
    k(f"v_add_f32 v10, v{KD}, v{KD+1}")
    for e in range(2, 24):
        k(f"v_add_f32 v10, v10, v{KD+e}")
    k.stamp(3)
    k(f"""
    s_cmp_ge_u32 s16, 20
    s_cbranch_scc1 L_pf_done
    v_and_b32 v8, 3, v0
    v_lshrrev_b32 v9, 2, v0
    v_mul_u32_u24 v9, 1280, v9
    v_lshlrev_b32 v8, 4, v8
    v_add_u32 v9, v9, v8
    s_mul_i32 s40, s19, {768*1280}
    s_lshl_b32 s41, s16, 6
    s_add_u32 s40, s40, s41
    """)
    for p in range(6):
        k(f"buffer_load_dwordx4 v[{PF+4*p}:{PF+4*p+3}], v9, s[52:55], s40 offen nt")
        if p < 5:
            k(f"s_add_u32 s40, s40, {128*1280}")
    k.label("L_pf_done")
    k.bf16r("v10")
    k(f"v_mul_f32 v10, {SCALE}, v10")
    k.bf16r("v10")
    k("v_mov_b32 v12, v10")
    k.allreduce("v_max_f32", "v12", "v13", 44)
    k(f"""
    v_sub_f32 v10, v10, v12
    v_mul_f32 v10, {LOG2E}, v10
    v_exp_f32 v10, v10
    s_nop 0
    v_mov_b32 v13, v10
    """)
    k.allreduce("v_add_f32", "v13", "v11", 44)
    k(f"""
    s_lshl_b32 s47, s14, 8
    s_add_u32 s47, s47, {A_LDS_P}
    v_lshlrev_b32 v8, 2, v1
    v_add_u32 v8, s47, v8
    ds_write_b32 v8, v10
    s_lshl_b32 s40, s14, 3
    v_mov_b32 v8, s40
    ds_write_b64 v8, v[12:13] offset:{A_LDS_M}
    v_add_u32 v8, s47, v5
    v_add_u32 v9, s47, v6
    v_add_u32 v10, s47, v7
    s_waitcnt lgkmcnt(0)
    """)
    for a in range(24):
        k(f"v_mov_b32 v{ACC+a}, 0")

    def accum(data, sc, j):
        for d in range(4):
            k(f"""
            v_lshlrev_b32 v14, 16, v{data+d}
            v_and_b32 v15, 0xffff0000, v{data+d}
            v_fmac_f32 v{ACC+8*j+2*d}, {sc}, v14
            v_fmac_f32 v{ACC+8*j+2*d+1}, {sc}, v15
            """)
    for g in range(8):
        k(f"""
        ds_read_b32 v11, v8 offset:{32*g}
        ds_read_b32 v12, v9 offset:{32*g}
        ds_read_b32 v13, v10 offset:{32*g}
        """)
        for j in range(3):
            i = 3 * g + j
            k(f"s_waitcnt vmcnt({23-i+NPF}) lgkmcnt({2-j})")
            accum(VD + 4 * i, f"v{11+j}", j)
    k(f"""
    s_mul_i32 s47, s14, 6144
    v_lshlrev_b32 v8, 5, v1
    v_add_u32 v8, s47, v8
    """)
    for j in range(3):
        k(f"""
        ds_write_b128 v8, v[{ACC+8*j}:{ACC+8*j+3}] offset:{A_LDS_A+2048*j}
        ds_write_b128 v8, v[{ACC+8*j+4}:{ACC+8*j+7}] offset:{A_LDS_A+2048*j+16}
        """)
    k.stamp(4)
    k("""
    s_waitcnt lgkmcnt(0)
    s_barrier
    s_cmp_ge_u32 s14, 3
    s_cbranch_scc1 L_att_fin
    v_mov_b32 v8, 0
    """)
    ML = 80
    for w in range(4):
        k(f"ds_read_b128 v[{ML+4*w}:{ML+3+4*w}], v8 offset:{A_LDS_M+16*w}")
    k("s_waitcnt lgkmcnt(0)")
    k(f"v_max_f32 v9, v{ML}, v{ML+2}")
    for w in range(2, 8):
        k(f"v_max_f32 v9, v9, v{ML+2*w}")
    for w in range(8):
        k(f"""
        v_sub_f32 v{96+w}, v{ML+2*w}, v9
        v_mul_f32 v{96+w}, {LOG2E}, v{96+w}
        v_exp_f32 v{96+w}, v{96+w}
        """)
    k(f"s_nop 0\nv_mul_f32 v10, v96, v{ML+1}")
    for w in range(1, 8):
        k(f"v_fmac_f32 v10, v{96+w}, v{ML+1+2*w}")
    k("v_lshlrev_b32 v8, 2, v0\nv_mov_b32 v11, 0")
    for half in range(2):
        for w in range(4):
            for r in range(8):
                k(f"ds_read_b32 v{104+8*w+r}, v8 offset:{A_LDS_A+6144*(4*half+w)+768*r}")
        k("s_waitcnt lgkmcnt(0)")
        for w in range(4):
            k(f"v_add_f32 v12, v{104+8*w}, v{105+8*w}")
            for r in range(2, 8):
                k(f"v_add_f32 v12, v12, v{104+8*w+r}")
            k(f"v_fmac_f32 v11, v{96+4*half+w}, v12")
    k(f"""
    s_lshl_b32 s40, s17, 5
    s_add_u32 s40, s40, s15
    s_lshl_b32 s40, s40, 2
    s_add_u32 s40, s40, s18
    s_lshl_b32 s40, s40, 10
    buffer_store_dword v11, v8, s[36:39], s40 offen offset:{WS_P2} sc1
    v_mov_b32 v12, v9
    v_mov_b32 v13, v10
    v_cmp_eq_u32 vcc, 0, v0
    s_and_saveexec_b64 s[42:43], vcc
    buffer_store_dwordx2 v[12:13], v8, s[36:39], s40 offen offset:768 sc1
    s_mov_b64 exec, s[42:43]
    """)
    k.label("L_att_fin")
    k("s_barrier")
    k.stamp(5)
    k("""
    s_cmp_ge_u32 s16, 20
    s_cbranch_scc1 L_ffn
    """)
    k(f"""
    s_lshr_b32 s40, s14, 2           ; b
    s_and_b32 s41, s14, 3            ; hh
    s_lshl_b32 s42, s40, 5
    s_lshl_b32 s43, s19, 2
    s_add_u32 s42, s42, s43
    s_add_u32 s42, s42, s41
    s_lshl_b32 s42, s42, 12
    v_lshlrev_b32 v8, 2, v1
    v_mov_b32 v9, 0
    """)
    def p2loads():
        for s in range(4):
            k(f"buffer_load_dwordx2 v[{80+2*s}:{81+2*s}], v9, s[36:39], s42 offen offset:{1024*s+768} sc1")
            for q in range(3):
                k(f"buffer_load_dword v{88+3*s+q}, v8, s[36:39], s42 offen offset:{1024*s+256*q} sc1")
    k.poll_data("L_pollA", p2loads, [f"v{80+i}" for i in range(20)], "v100", sleep=1)
    k.stamp(6)
    k("""
    v_max_f32 v100, v80, v82
    v_max_f32 v100, v100, v84
    v_max_f32 v100, v100, v86
    """)
    for s in range(4):
        k(f"""
        v_sub_f32 v{101+s}, v{80+2*s}, v100
        v_mul_f32 v{101+s}, {LOG2E}, v{101+s}
        v_exp_f32 v{101+s}, v{101+s}
        """)
    k("""
    s_nop 0
    v_mul_f32 v105, v101, v81
    v_fmac_f32 v105, v102, v83
    v_fmac_f32 v105, v103, v85
    v_fmac_f32 v105, v104, v87
    v_rcp_f32 v105, v105
    """)
    k(f"""
    s_mul_i32 s43, s40, 3072
    s_mul_i32 s44, s41, 768
    s_add_u32 s43, s43, s44
    v_add_u32 v9, s43, v8
    """)
    for q in range(3):
        k(f"""
        v_mul_f32 v{106+q}, v101, v{88+q}
        v_fmac_f32 v{106+q}, v102, v{91+q}
        v_fmac_f32 v{106+q}, v103, v{94+q}
        v_fmac_f32 v{106+q}, v104, v{97+q}
        v_mul_f32 v{106+q}, v{106+q}, v105
        """)
        k.bf16r(f"v{106+q}")
        k(f"ds_write_b32 v9, v{106+q} offset:{T_O+256*q}")
    k("""
    s_waitcnt lgkmcnt(0)
    s_barrier
    v_lshrrev_b32 v8, 2, v0
    v_lshlrev_b32 v8, 2, v8
    """)
    for a in range(16):
        k(f"v_mov_b32 v{ACC+a}, 0")
    for p in range(6):
        k(f"""
        ds_read_b32 v{80+2*p}, v8 offset:{T_O+512*p}
        ds_read_b32 v{81+2*p}, v8 offset:{T_O+3072+512*p}
        """)
    k("s_waitcnt lgkmcnt(0)")
    for p in range(6):
        for d in range(4):
            k(f"""
            v_lshlrev_b32 v12, 16, v{PF+4*p+d}
            v_and_b32 v13, 0xffff0000, v{PF+4*p+d}
            v_fmac_f32 v{ACC+2*d}, v{80+2*p}, v12
            v_fmac_f32 v{ACC+2*d+1}, v{80+2*p}, v13
            v_fmac_f32 v{ACC+8+2*d}, v{81+2*p}, v12
            v_fmac_f32 v{ACC+8+2*d+1}, v{81+2*p}, v13
            """)
    k("v_lshlrev_b32 v8, 6, v0")
    for q in range(4):
        k(f"ds_write_b128 v8, v[{ACC+4*q}:{ACC+4*q+3}] offset:{T_R+16*q}")
    k(f"""
    s_waitcnt lgkmcnt(0)
    s_barrier
    v_lshrrev_b32 v8, 3, v0
    v_and_b32 v9, 7, v0
    v_lshrrev_b32 v10, 5, v8
    v_and_b32 v11, 31, v8
    v_lshrrev_b32 v12, 3, v11
    v_and_b32 v13, 7, v11
    v_lshlrev_b32 v14, 12, v9
    v_lshlrev_b32 v12, 6, v12
    v_add_u32 v14, v14, v12
    v_lshlrev_b32 v12, 5, v10
    v_add_u32 v14, v14, v12
    v_lshlrev_b32 v13, 2, v13
    v_add_u32 v14, v14, v13
    """)
    for r in range(16):
        k(f"ds_read_b32 v{ACC+r}, v14 offset:{T_R+256*r}")
    k("s_waitcnt lgkmcnt(0)")
    for r in range(1, 16):
        k(f"v_add_f32 v{ACC}, v{ACC}, v{ACC+r}")
    k.reduce8(f"v{ACC}", f"v{ACC+1}")
    k(f"""
    v_mul_u32_u24 v12, 640, v10
    v_add_u32 v12, v12, v11
    v_lshlrev_b32 v12, 2, v12
    s_mul_i32 s40, s19, 5120
    s_lshl_b32 s41, s16, 7
    s_add_u32 s40, s40, s41
    s_add_u32 s40, s40, {WS_P3}
    v_cmp_eq_u32 vcc, 0, v9
    s_and_saveexec_b64 s[42:43], vcc
    buffer_store_dword v{ACC}, v12, s[36:39], s40 offen sc1
    s_mov_b64 exec, s[42:43]
    """)
    k.stamp(7)
    k("""
    s_cmp_ge_u32 s2, 40
    s_cbranch_scc1 L_end
    s_barrier
    """)
    k(f"""
    v_and_b32 v8, 31, v0
    v_lshrrev_b32 v9, 5, v0
    s_lshl_b32 s40, s2, 5
    v_add_u32 v10, s40, v8
    v_lshlrev_b32 v11, 2, v10
    v_mul_u32_u24 v12, {6*5120}, v9
    v_add_u32 v12, v12, v11
    """)
    def p4loads():
        k(f"s_mov_b32 s41, {WS_P4}")
        for i in range(6):
            k(f"buffer_load_dword v{16+i}, v12, s[36:39], s41 offen sc1")
            if i < 5:
                k("s_add_u32 s41, s41, 5120")
        k(f"""
        s_mov_b32 s41, {WS_H}
        buffer_load_dword v22, v11, s[36:39], s41 offen sc1
        """)
    k.poll_data("L_pollC", p4loads, [f"v{16+i}" for i in range(7)], "v23", sleep=2)
    k.stamp(8)
    for i in range(1, 6):
        k(f"v_add_f32 v16, v16, v{16+i}")
    k("""
    v_lshlrev_b32 v13, 2, v0
    ds_write_b32 v13, v16
    s_waitcnt lgkmcnt(0)
    s_barrier
    v_cmp_gt_u32 vcc, 32, v0
    s_and_saveexec_b64 s[42:43], vcc
    s_cbranch_execz L_end
    """)
    for q in range(16):
        k(f"ds_read_b32 v{24+q}, v13 offset:{128*q}")
    k("s_waitcnt lgkmcnt(0)")
    for q in range(1, 16):
        k(f"v_add_f32 v24, v24, v{24+q}")
    k.bf16r("v24")
    k("""
    v_add_f32 v24, v24, v22
    v_cvt_pk_bf16_f32 v24, v24, v24
    v_lshlrev_b32 v14, 1, v10
    buffer_store_short v24, v14, s[68:71], 0 offen
    s_branch L_end
    """)
    k.label("L_ffn")
    k(f"""
    v_and_b32 v8, 1, v0
    v_lshrrev_b32 v9, 1, v0
    v_and_b32 v9, 127, v9
    v_mul_u32_u24 v9, 3072, v9
    v_lshlrev_b32 v8, 4, v8
    v_add_u32 v9, v9, v8
    s_lshl_b32 s40, s13, 5
    """)
    for p in range(5):
        k(f"buffer_load_dwordx4 v[{PF+4*p}:{PF+4*p+3}], v9, s[48:51], s40 offen nt")
        if p < 4:
            k(f"s_add_u32 s40, s40, {128*3072}")
    k(f"""
    v_mul_u32_u24 v8, 205, v0
    v_lshrrev_b32 v8, 14, v8
    v_mul_u32_u24 v9, 80, v8
    v_sub_u32 v9, v0, v9
    v_mul_u32_u24 v8, 1280, v8
    v_lshlrev_b32 v9, 4, v9
    v_add_u32 v9, v9, v8
    s_mul_i32 s40, s13, {16*1280}
    """)
    for kk in range(3):
        k(f"buffer_load_dwordx4 v[{PF+20+4*kk}:{PF+23+4*kk}], v9, s[64:67], s40 offen nt")
        if kk < 2:
            k(f"s_add_u32 s40, s40, {6*1280}")
    for kk in range(3):
        k(f"""
        v_add_u32 v14, {512*kk}, v0
        v_min_u32 v14, 1279, v14
        v_lshlrev_b32 v{8+kk}, 2, v14
        v_lshlrev_b32 v14, 1, v14
        buffer_load_ushort v{11+kk}, v14, s[20:23], 0 offen
        """)
    def p3loads():
        k(f"s_mov_b32 s40, {WS_P3}")
        for ks in range(8):
            for kk in range(3):
                k(f"buffer_load_dword v{80+3*ks+kk}, v{8+kk}, s[36:39], s40 offen sc1")
            if ks < 7:
                k("s_add_u32 s40, s40, 5120")
    k.poll_data("L_pollB", p3loads, [f"v{80+i}" for i in range(24)], "v14", sleep=4)
    k.stamp(6)
    for kk in range(3):
        for ks in range(1, 8):
            k(f"v_add_f32 v{80+kk}, v{80+kk}, v{80+3*ks+kk}")
        k.bf16r(f"v{80+kk}")
        k(f"""
        v_lshlrev_b32 v{11+kk}, 16, v{11+kk}
        v_add_f32 v{80+kk}, v{80+kk}, v{11+kk}
        """)
        k.bf16r(f"v{80+kk}")
        k(f"ds_write_b32 v{8+kk}, v{80+kk} offset:{T_H}")
    k(f"""
    s_cmp_lg_u32 s13, 0
    s_cbranch_scc1 L_noh
    s_mov_b32 s40, {WS_H}
    """)
    for kk in range(3):
        k(f"buffer_store_dword v{80+kk}, v{8+kk}, s[36:39], s40 offen sc1")
    k.label("L_noh")
    k("""
    s_waitcnt lgkmcnt(0)
    s_barrier
    v_lshlrev_b32 v14, 2, v1
    """)
    for b in range(2):
        for e in range(10):
            k(f"ds_read_b32 v{104+10*b+e}, v14 offset:{T_H+2560*b+256*e}")
    k("s_waitcnt lgkmcnt(0)")
    for b in range(2):
        k.ln_stats([f"v{104+10*b+e}" for e in range(10)], "v26", "v27", f"v{76+b}", f"v{78+b}", 44)
    for a in range(16):
        k(f"v_mov_b32 v{ACC+a}, 0")
    k("""
    v_lshrrev_b32 v14, 1, v0
    v_and_b32 v14, 127, v14
    v_lshlrev_b32 v14, 2, v14
    """)
    for p in range(5):
        k(f"""
        ds_read_b32 v{104+2*p}, v14 offset:{T_H+512*p}
        ds_read_b32 v{105+2*p}, v14 offset:{T_H+2560+512*p}
        """)
    k("s_waitcnt lgkmcnt(0)")
    for p in range(5):
        for b in range(2):
            r = 104 + 2 * p + b
            k(f"v_sub_f32 v{r}, v{r}, v{76+b}")
            k.bf16r(f"v{r}")
            k(f"v_mul_f32 v{r}, v{r}, v{78+b}")
            k.bf16r(f"v{r}")
        for d in range(4):
            k(f"""
            v_lshlrev_b32 v34, 16, v{PF+4*p+d}
            v_and_b32 v35, 0xffff0000, v{PF+4*p+d}
            v_fmac_f32 v{ACC+2*d}, v{104+2*p}, v34
            v_fmac_f32 v{ACC+2*d+1}, v{104+2*p}, v35
            v_fmac_f32 v{ACC+8+2*d}, v{105+2*p}, v34
            v_fmac_f32 v{ACC+8+2*d+1}, v{105+2*p}, v35
            """)
    k("v_lshlrev_b32 v14, 6, v0")
    for q in range(4):
        k(f"ds_write_b128 v14, v[{ACC+4*q}:{ACC+4*q+3}] offset:{T_R+16*q}")
    k(f"""
    s_waitcnt lgkmcnt(0)
    s_barrier
    v_lshrrev_b32 v14, 3, v0
    v_and_b32 v15, 7, v0
    v_lshrrev_b32 v32, 5, v14
    v_lshrrev_b32 v33, 4, v14
    v_and_b32 v33, 1, v33
    v_lshrrev_b32 v34, 3, v14
    v_and_b32 v34, 1, v34
    v_and_b32 v35, 7, v14
    v_lshlrev_b32 v36, 11, v15
    v_lshlrev_b32 v32, 14, v32
    v_add_u32 v36, v36, v32
    v_lshlrev_b32 v34, 6, v34
    v_add_u32 v36, v36, v34
    v_lshlrev_b32 v33, 5, v33
    v_add_u32 v36, v36, v33
    v_lshlrev_b32 v35, 2, v35
    v_add_u32 v36, v36, v35
    """)
    for r in range(16):
        k(f"ds_read_b32 v{ACC+r}, v36 offset:{T_R+128*r}")
    k("s_waitcnt lgkmcnt(0)")
    for r in range(1, 16):
        k(f"v_add_f32 v{ACC}, v{ACC}, v{ACC+r}")
    k.reduce8(f"v{ACC}", f"v{ACC+1}")
    k.bf16r(f"v{ACC}")
    k(f"""
    v_lshlrev_b32 v32, 2, v14
    ds_write_b32 v32, v{ACC} offset:{T_GU}
    s_waitcnt lgkmcnt(0)
    s_barrier
    s_cmp_lg_u32 s14, 0
    s_cbranch_scc1 L_act_done
    v_and_b32 v13, 15, v0
    v_lshrrev_b32 v14, 5, v0
    v_lshrrev_b32 v15, 4, v0
    v_and_b32 v15, 1, v15
    v_lshlrev_b32 v16, 6, v14
    v_lshlrev_b32 v17, 2, v13
    v_add_u32 v16, v16, v17
    ds_read_b32 v18, v16 offset:{T_GU}
    ds_read_b32 v19, v16 offset:{T_GU+128}
    s_waitcnt lgkmcnt(0)
    v_mul_f32 v20, v18, v18
    v_mul_f32 v20, v20, v18
    v_mov_b32 v21, 0x3d372713
    v_fma_f32 v20, v20, v21, v18
    v_mul_f32 v20, 0x3f4c422a, v20
    v_mul_f32 v20, 0x4038aa3b, v20
    v_exp_f32 v20, v20
    s_nop 0
    v_add_f32 v20, 1.0, v20
    v_rcp_f32 v20, v20
    s_nop 0
    v_fma_f32 v20, v20, -2.0, 1.0
    v_add_f32 v20, 1.0, v20
    v_mul_f32 v20, v20, v18
    v_mul_f32 v20, 0.5, v20
    """)
    k.bf16r("v20")
    k("v_mul_f32 v20, v20, v19")
    k.bf16r("v20")
    k(f"""
    v_cmp_eq_u32 vcc, 0, v15
    s_nop 1
    v_cndmask_b32 v20, 0, v20, vcc
    v_lshlrev_b32 v16, 2, v0
    ds_write_b32 v16, v20 offset:{T_ACT}
    """)
    k.label("L_act_done")
    k(f"""
    s_waitcnt lgkmcnt(0)
    s_barrier
    v_mul_u32_u24 v14, 205, v0
    v_lshrrev_b32 v14, 14, v14
    v_lshlrev_b32 v14, 2, v14
    """)
    for a in range(16):
        k(f"v_mov_b32 v{ACC+a}, 0")
    for kk in range(3):
        k(f"""
        ds_read_b32 v{104+2*kk}, v14 offset:{T_ACT+24*kk}
        ds_read_b32 v{105+2*kk}, v14 offset:{T_ACT+128+24*kk}
        """)
    k("s_waitcnt lgkmcnt(0)")
    for kk in range(3):
        for d in range(4):
            k(f"""
            v_lshlrev_b32 v34, 16, v{PF+20+4*kk+d}
            v_and_b32 v35, 0xffff0000, v{PF+20+4*kk+d}
            v_fmac_f32 v{ACC+2*d}, v{104+2*kk}, v34
            v_fmac_f32 v{ACC+2*d+1}, v{104+2*kk}, v35
            v_fmac_f32 v{ACC+8+2*d}, v{105+2*kk}, v34
            v_fmac_f32 v{ACC+8+2*d+1}, v{105+2*kk}, v35
            """)
    k(f"""
    v_cmp_gt_u32 vcc, 480, v0
    s_and_saveexec_b64 s[42:43], vcc
    v_lshlrev_b32 v14, 6, v0
    """)
    for q in range(4):
        k(f"ds_write_b128 v14, v[{ACC+4*q}:{ACC+4*q+3}] offset:{T_D+16*q}")
    k(f"""
    s_mov_b64 exec, s[42:43]
    s_waitcnt lgkmcnt(0)
    s_barrier
    s_mul_i32 s40, s13, 5120
    s_add_u32 s40, s40, {WS_P4}
    """)
    for kk in range(3):
        k(f"""
        v_lshrrev_b32 v14, 2, v{8+kk}
        v_cmp_le_u32 vcc, 640, v14
        s_nop 1
        v_cndmask_b32 v15, 0, 1, vcc
        v_mul_u32_u24 v32, 640, v15
        v_sub_u32 v14, v14, v32
        v_lshrrev_b32 v32, 3, v14
        v_and_b32 v33, 7, v14
        v_lshlrev_b32 v32, 6, v32
        v_lshlrev_b32 v33, 2, v33
        v_add_u32 v32, v32, v33
        v_lshlrev_b32 v15, 5, v15
        v_add_u32 v32, v32, v15
        """)
        for r in range(6):
            k(f"ds_read_b32 v{104+6*kk+r}, v32 offset:{T_D+5120*r}")
    k("s_waitcnt lgkmcnt(0)")
    for kk in range(3):
        for r in range(1, 6):
            k(f"v_add_f32 v{104+6*kk}, v{104+6*kk}, v{104+6*kk+r}")
        k(f"buffer_store_dword v{104+6*kk}, v{8+kk}, s[36:39], s40 offen sc1")
    k.label("L_end")
    if STAMP:
        k.stamp(9)
        k(f"""
        s_mov_b64 exec, -1
        s_cmp_ge_u32 s2, 256
        s_cbranch_scc1 L_end2
        s_cmp_lg_u32 s14, 0
        s_cbranch_scc1 L_end2
        s_lshl_b32 s40, s2, 6
        s_add_u32 s40, s40, {WS_T}
        v_mov_b32 v8, 0
        v_cmp_eq_u32 vcc, 0, v1
        s_and_saveexec_b64 s[42:43], vcc
        """)
        for i in range(10):
            k(f"v_mov_b32 v9, s{3+i}\nbuffer_store_dword v9, v8, s[36:39], s40 offen offset:{4*i}\ns_nop 1")
        k.label("L_end2")
    k("s_endpgm")
    return k.text()


def main():
    ref = open(REF).read().split("\n")
    hdr = [l for l in ref if l.startswith(";") and "@launch" not in l and "Override launch" not in l and "grid=ceil" not in l]
    name = NAME + "_kernel"
    out = "\n".join(hdr) + "\n"
    out += f"; @launch grid=(256,1,1) block=(512,1,1) lds={A_LDS}\n"
    out += '.amdgcn_target "amdgcn-amd-amdhsa--gfx950"\n.text\n'
    out += f".globl {name}\n.p2align 8\n.type {name},@function\n{name}:\n" + gen()
    out += f""".section .rodata,"a"
.p2align 6
.amdhsa_kernel {name}
  .amdhsa_next_free_vgpr 256
  .amdhsa_next_free_sgpr 102
  .amdhsa_accum_offset 256
  .amdhsa_group_segment_fixed_size 0
  .amdhsa_kernarg_size 96
  .amdhsa_user_sgpr_count 2
  .amdhsa_user_sgpr_kernarg_segment_ptr 1
  .amdhsa_system_sgpr_workgroup_id_x 1
.end_amdhsa_kernel
"""
    open(os.environ.get("OUTF", OUT), "w").write(out)


main()
```

```python
import sys, os
NAME = "sequential_preLN__sliding_block_cached__geglu_ffn__decode"
OUT = "cdna_kernels/%s.s" % NAME
REF = OUT + ".ref"

LOG2E = 0x3fb8aa3b
SCALE = 0x3d93cd3a
EPS = 0x3727c5ac
INV640 = 0x3acccccd

WS_P2 = 0
WS_P3 = 0x40000
WS_P4 = 0x50000
WS_H = 0xD0000
WS_Q = 0x100000
WS_T = 0x170000
WS_SIZE = 0x180000
SPIN_MAX = 100000
STAMP = int(os.environ.get("STAMP", "0"))


class K:
    def __init__(self):
        self.l = []

    def __call__(self, s):
        for line in s.strip("\n").split("\n"):
            self.l.append("    " + line.strip())

    def label(self, s):
        self.l.append(s + ":")

    def text(self):
        return "\n".join(self.l) + "\n"

    def allreduce(self, op, v, t, sa):
        self(f"""
        s_nop 1
        {op}_dpp {t}, {v}, {v} quad_perm:[1,0,3,2] row_mask:0xf bank_mask:0xf
        s_nop 1
        {op}_dpp {v}, {t}, {t} quad_perm:[2,3,0,1] row_mask:0xf bank_mask:0xf
        s_nop 1
        {op}_dpp {t}, {v}, {v} row_half_mirror row_mask:0xf bank_mask:0xf
        s_nop 1
        {op}_dpp {v}, {t}, {t} row_mirror row_mask:0xf bank_mask:0xf
        s_nop 1
        v_readlane_b32 s{sa}, {v}, 0
        v_readlane_b32 s{sa+1}, {v}, 16
        v_readlane_b32 s{sa+2}, {v}, 32
        v_readlane_b32 s{sa+3}, {v}, 48
        s_nop 1
        v_mov_b32 {v}, s{sa}
        {op} {v}, s{sa+1}, {v}
        {op} {v}, s{sa+2}, {v}
        {op} {v}, s{sa+3}, {v}
        """)

    def reduce8(self, v, t):
        self(f"""
        s_nop 1
        v_add_f32_dpp {t}, {v}, {v} quad_perm:[1,0,3,2] row_mask:0xf bank_mask:0xf
        s_nop 1
        v_add_f32_dpp {v}, {t}, {t} quad_perm:[2,3,0,1] row_mask:0xf bank_mask:0xf
        s_nop 1
        v_add_f32_dpp {t}, {v}, {v} row_half_mirror row_mask:0xf bank_mask:0xf
        s_nop 1
        v_mov_b32 {v}, {t}
        """)

    def bf16r(self, v):
        self(f"""
        v_cvt_pk_bf16_f32 {v}, {v}, {v}
        v_lshlrev_b32 {v}, 16, {v}
        """)

    def srd(self, d, base, size):
        self(f"""
        s_mov_b32 s{d}, s{base}
        s_and_b32 s{d+1}, s{base+1}, 0xffff
        s_mov_b32 s{d+2}, {size}
        s_mov_b32 s{d+3}, 0x00020000
        """)

    def ln_stats(self, vals, vsum, vt, vmean_bf, vrcp, sa):
        self(f"v_add_f32 {vsum}, {vals[0]}, {vals[1]}")
        for v in vals[2:]:
            self(f"v_add_f32 {vsum}, {vsum}, {v}")
        self.allreduce("v_add_f32", vsum, vt, sa)
        self(f"""
        v_mul_f32 {vsum}, {INV640}, {vsum}
        v_mov_b32 {vmean_bf}, {vsum}
        """)
        self.bf16r(vmean_bf)
        self(f"""
        v_sub_f32 {vt}, {vals[0]}, {vsum}
        v_mul_f32 {vrcp}, {vt}, {vt}
        """)
        for v in vals[1:]:
            self(f"""
            v_sub_f32 {vt}, {v}, {vsum}
            v_fmac_f32 {vrcp}, {vt}, {vt}
            """)
        self.allreduce("v_add_f32", vrcp, vt, sa)
        self(f"v_mul_f32 {vrcp}, {INV640}, {vrcp}")
        self.bf16r(vrcp)
        self(f"v_add_f32 {vrcp}, {EPS}, {vrcp}")
        self.bf16r(vrcp)
        self(f"v_sqrt_f32 {vrcp}, {vrcp}\ns_nop 0")
        self.bf16r(vrcp)
        self(f"v_rcp_f32 {vrcp}, {vrcp}\ns_nop 0")

    def stamp(self, i):
        if STAMP:
            self(f"""
            s_memrealtime s[100:101]
            s_waitcnt lgkmcnt(0)
            s_mov_b32 s{3+i}, s100
            """)

    def poll_data(self, name, emit_loads, regs, tmp, sleep=2):
        self("s_mov_b32 s47, 0")
        self.label(name)
        emit_loads()
        self("s_waitcnt vmcnt(0)")
        self(f"v_max_u32 {tmp}, {regs[0]}, {regs[1]}")
        for r in regs[2:]:
            self(f"v_max_u32 {tmp}, {tmp}, {r}")
        self(f"""
        v_cmp_eq_u32 vcc, -1, {tmp}
        s_nop 3
        s_cmp_eq_u64 vcc, 0
        s_cbranch_scc1 {name}_done
        s_add_u32 s47, s47, 1
        s_cmp_ge_u32 s47, {SPIN_MAX}
        s_cbranch_scc1 {name}_done
        s_sleep {sleep}
        s_branch {name}
        """)
        self.label(name + "_done")


A_LDS_Q = 0
A_LDS_M = 512
A_LDS_P = 1024
A_LDS_A = 4096
A_LDS_B = 53248
A_LDS_C = 102400
A_LDS = 122880
T_O = 0
T_H = 0
T_GU = 5120
T_ACT = 5376
T_R = 8192
T_D = 8192


def gen():
    k = K()
    ACC = 16
    KD = 40
    VD = 136
    WQ = 232
    QC = 232
    PF = 40
    NPF = 0
    DEPTH = int(os.environ.get("DEPTH", "10"))
    k(f"""
    s_cmp_ge_u32 s2, 256
    s_cbranch_scc1 L_end
    s_load_dwordx16 s[76:91], s[0:1], 0
    s_load_dwordx8 s[92:99], s[0:1], 64
    v_lshrrev_b32 v2, 6, v0
    v_and_b32 v1, 63, v0
    s_nop 0
    v_readfirstlane_b32 s14, v2
    s_and_b32 s19, s2, 7
    s_lshr_b32 s16, s2, 3          ; i
    s_and_b32 s17, s16, 3
    s_lshl_b32 s15, s19, 2
    s_add_u32 s15, s15, s17        ; head
    s_lshr_b32 s17, s16, 2
    s_and_b32 s17, s17, 1          ; b
    s_lshr_b32 s18, s16, 3         ; split
    s_sub_u32 s13, s16, 20
    s_lshl_b32 s13, s13, 3
    s_add_u32 s13, s13, s19
    s_waitcnt lgkmcnt(0)
    """)
    if STAMP:
        for i in range(10):
            k(f"s_mov_b32 s{3+i}, 0")
    k.stamp(0)
    k.srd(20, 76, 2560)
    k.srd(24, 78, 201326592)
    k.srd(28, 80, 201326592)
    k.srd(32, 82, 7864320)
    k.srd(36, 98, WS_SIZE)
    k.srd(52, 84, 7864320)
    k.srd(56, 88, 1966080)
    k.srd(60, 90, 1966080)
    k.srd(64, 92, 1966080)
    k.srd(68, 94, 2560)
    k.srd(72, 96, 256)
    k("""
    s_cmp_lt_u32 s14, 4
    s_cselect_b32 s48, s56, s60
    s_cselect_b32 s49, s57, s61
    s_mov_b32 s50, 1966080
    s_mov_b32 s51, 0x00020000
    """)
    k(f"""
    v_mov_b32 v4, -1
    v_mov_b32 v5, -1
    v_mov_b32 v6, -1
    v_mov_b32 v7, -1
    v_lshlrev_b32 v8, 4, v1          ; lane*16
    s_lshl_b32 s42, s17, 5
    s_add_u32 s42, s42, s15
    s_lshl_b32 s42, s42, 2
    s_add_u32 s42, s42, s18
    s_lshl_b32 s42, s42, 10
    s_lshr_b32 s43, s16, 2           ; ksq
    s_mul_i32 s43, s43, {2*6144*4}
    s_mul_i32 s44, s15, 768
    s_add_u32 s43, s43, s44
    s_add_u32 s43, s43, {WS_Q}
    s_mov_b32 s40, s42
    s_mov_b32 s41, 64
    s_cmp_eq_u32 s14, 0
    s_cbranch_scc1 L_clr_go
    s_mov_b32 s40, s43
    s_mov_b32 s41, 48
    s_cmp_eq_u32 s14, 1
    s_cbranch_scc1 L_clr_go
    s_add_u32 s40, s43, 24576
    s_cmp_eq_u32 s14, 2
    s_cbranch_scc1 L_clr_go
    s_cmp_ge_u32 s16, 20
    s_cbranch_scc1 L_clr_ffn
    s_mov_b32 s41, 0
    s_cmp_ge_u32 s14, 5
    s_cbranch_scc1 L_clr_go
    s_mul_i32 s40, s19, 5120
    s_lshl_b32 s44, s16, 7
    s_add_u32 s40, s40, s44
    s_add_u32 s40, s40, {WS_P3}
    s_sub_u32 s44, s14, 3
    s_mul_i32 s44, s44, 2560
    s_add_u32 s40, s40, s44
    s_mov_b32 s41, 8
    s_branch L_clr_go
    """)
    k.label("L_clr_ffn")
    k(f"""
    s_mul_i32 s40, s13, 5120
    s_sub_u32 s44, s14, 3
    s_lshl_b32 s44, s44, 10
    s_add_u32 s40, s40, s44
    s_add_u32 s40, s40, {WS_P4}
    s_mov_b32 s41, 64
    s_cmp_lg_u32 s13, 0
    s_cbranch_scc1 L_clr_go
    s_add_u32 s45, s44, {WS_H}
    buffer_store_dwordx4 v[4:7], v8, s[36:39], s45 offen sc1
    """)
    k.label("L_clr_go")
    k("""
    v_cmp_gt_u32 vcc, s41, v1
    s_and_saveexec_b64 s[44:45], vcc
    s_cbranch_execz L_clr_skip
    buffer_store_dwordx4 v[4:7], v8, s[36:39], s40 offen sc1
    """)
    k.label("L_clr_skip")
    k("s_mov_b64 exec, s[44:45]")
    for j in range(3):
        k(f"""
        v_add_u32 v8, {64*j}, v1
        v_mul_u32_u24 v9, 683, v8
        v_lshrrev_b32 v9, 14, v9
        v_mul_u32_u24 v10, 24, v9
        v_sub_u32 v10, v8, v10
        v_lshlrev_b32 v{2+j}, 4, v10
        v_lshlrev_b32 v{5+j}, 2, v9
        """)
    k("v_lshlrev_b32 v8, 2, v1")
    for b in range(2):
        for kk in range(5):
            k(f"buffer_load_dword v{16+5*b+kk}, v8, s[20:23], 0 offen offset:{1280*b+256*kk}")
    k(f"""
    v_mul_u32_u24 v9, 683, v0
    v_lshrrev_b32 v9, 14, v9
    v_mul_u32_u24 v10, 24, v9
    v_sub_u32 v10, v0, v10           ; cc
    v_min_u32 v11, 19, v9
    v_mul_u32_u24 v12, 12288, v11
    v_lshlrev_b32 v10, 4, v10
    v_add_u32 v12, v12, v10
    s_lshr_b32 s40, s16, 2
    s_mul_i32 s40, s40, {80*12288}
    s_mul_i32 s41, s15, 384
    s_add_u32 s40, s40, s41
    """)
    for p in range(4):
        k(f"buffer_load_dwordx4 v[{WQ+4*p}:{WQ+4*p+3}], v12, s[32:35], s40 offen")
        if p < 3:
            k(f"s_add_u32 s40, s40, {20*12288}")
    k(f"""
    s_barrier
    s_lshl_b32 s43, s17, 5
    s_add_u32 s43, s43, s15
    s_lshl_b32 s43, s43, 13
    s_add_u32 s43, s43, 6144
    s_lshl_b32 s44, s18, 9
    s_add_u32 s43, s43, s44
    s_lshl_b32 s44, s14, 6
    s_add_u32 s43, s43, s44
    s_mul_i32 s43, s43, 384
    v_lshlrev_b32 v249, 4, v1
    """)
    state = {"n": 0}

    def issue(cnt, wait=True):
        for _ in range(cnt):
            n = state["n"]
            if n >= 48:
                return
            isv = n >= 24
            i = n - 24 if isv else n
            base = VD if isv else KD
            srd = "s[28:31]" if isv else "s[24:27]"
            if i % 4 == 0:
                k(f"s_add_u32 s99, s43, {1024*i}")
            if wait:
                k(f"s_waitcnt vmcnt({DEPTH-1})")
            k(f"buffer_load_dwordx4 v[{base+4*i}:{base+4*i+3}], v249, {srd}, s99 offen offset:{1024*(i%4)} nt")
            state["n"] = n + 1
    issue(10, wait=False)
    k("s_waitcnt vmcnt(10)")
    k.stamp(1)
    k(f"v_lshlrev_b32 v8, 3, v1\nv_add_u32 v8, {A_LDS_C}, v8")
    for b in range(2):
        X = 136 + 10 * b
        for kk in range(5):
            k(f"""
            v_lshlrev_b32 v{X+2*kk}, 16, v{16+5*b+kk}
            v_and_b32 v{X+1+2*kk}, 0xffff0000, v{16+5*b+kk}
            """)
        k.ln_stats([f"v{X+e}" for e in range(10)], "v160", "v161", "v162", "v163", 44)
        for e in range(10):
            k(f"v_sub_f32 v{X+e}, v{X+e}, v162")
            k.bf16r(f"v{X+e}")
            k(f"v_mul_f32 v{X+e}, v{X+e}, v163")
            k.bf16r(f"v{X+e}")
        for kk in range(5):
            k(f"ds_write_b64 v8, v[{X+2*kk}:{X+1+2*kk}] offset:{2560*b+512*kk}")
    k(f"""
    s_lshr_b32 s40, s16, 2
    s_mul_i32 s40, s40, 320
    s_add_u32 s40, s40, {A_LDS_C}
    v_lshlrev_b32 v8, 2, v11
    v_add_u32 v8, s40, v8
    s_waitcnt lgkmcnt(0)
    """)
    for a in range(16):
        k(f"v_mov_b32 v{ACC+a}, 0")
    for p in range(4):
        k(f"""
        ds_read_b32 v12, v8 offset:{80*p}
        ds_read_b32 v13, v8 offset:{2560+80*p}
        s_waitcnt lgkmcnt(0)
        """)
        for d in range(4):
            k(f"""
            v_lshlrev_b32 v14, 16, v{WQ+4*p+d}
            v_and_b32 v15, 0xffff0000, v{WQ+4*p+d}
            v_fmac_f32 v{ACC+2*d}, v12, v14
            v_fmac_f32 v{ACC+2*d+1}, v12, v15
            v_fmac_f32 v{ACC+8+2*d}, v13, v14
            v_fmac_f32 v{ACC+8+2*d+1}, v13, v15
            """)
    k(f"""
    v_cmp_gt_u32 vcc, 480, v0
    s_and_saveexec_b64 s[44:45], vcc
    v_lshlrev_b32 v8, 6, v0
    """)
    for q in range(4):
        k(f"ds_write_b128 v8, v[{ACC+4*q}:{ACC+4*q+3}] offset:{A_LDS_A+16*q}")
    k("s_mov_b64 exec, s[44:45]")
    k(f"""
    s_waitcnt lgkmcnt(0)
    s_barrier
    s_cmp_lg_u32 s14, 0
    s_cbranch_scc1 L_noadd
    v_mov_b32 v8, 1
    s_lshl_b32 s40, s19, 5
    v_mov_b32 v9, s40
    v_cmp_eq_u32 vcc, 0, v1
    s_and_saveexec_b64 s[44:45], vcc
    buffer_atomic_add v8, v9, s[72:75], 0 offen
    s_mov_b64 exec, s[44:45]
    """)
    k.label("L_noadd")
    k(f"""
    s_cmp_ge_u32 s14, 6
    s_cbranch_scc1 L_qp_skip
    ; t<384: b = t/192, d = t%192
    v_cmp_le_u32 vcc, 192, v0
    s_nop 1
    v_cndmask_b32 v8, 0, 1, vcc      ; b
    v_mul_u32_u24 v9, 192, v8
    v_sub_u32 v9, v0, v9             ; d
    v_lshrrev_b32 v10, 3, v9
    v_and_b32 v11, 7, v9
    v_lshlrev_b32 v10, 6, v10
    v_lshlrev_b32 v11, 2, v11
    v_add_u32 v10, v10, v11
    v_lshlrev_b32 v11, 5, v8
    v_add_u32 v10, v10, v11
    """)
    for rr in range(20):
        k(f"ds_read_b32 v{ACC+rr}, v10 offset:{A_LDS_A+1536*rr}")
    k("s_waitcnt lgkmcnt(0)")
    for rr in range(1, 20):
        k(f"v_add_f32 v{ACC}, v{ACC}, v{ACC+rr}")
    k(f"""
    v_mul_u32_u24 v11, 24576, v8
    v_lshlrev_b32 v9, 2, v9
    v_add_u32 v11, v11, v9
    s_lshr_b32 s40, s16, 2
    s_mul_i32 s40, s40, {2*6144*4}
    s_mul_i32 s41, s15, 768
    s_add_u32 s40, s40, s41
    s_add_u32 s40, s40, {WS_Q}
    buffer_store_dword v{ACC}, v11, s[36:39], s40 offen sc1
    """)
    k.label("L_qp_skip")
    k.stamp(2)
    NQ = int(os.environ.get('NQ', '28'))
    issue(NQ - 10)
    k(f"""
    v_and_b32 v8, 7, v1
    v_lshlrev_b32 v8, 5, v8
    buffer_load_dword v248, v8, s[72:75], 0 offen sc1
    s_cmp_ge_u32 s14, 3
    s_cbranch_scc1 L_ql_skip
    v_lshlrev_b32 v8, 2, v0
    s_mul_i32 s40, s17, 24576
    s_mul_i32 s41, s15, 768
    s_add_u32 s40, s40, s41
    s_add_u32 s40, s40, {WS_Q}
    """)
    for ks in range(8):
        k(f"buffer_load_dword v{ACC+ks}, v8, s[36:39], s40 offen sc1")
        if ks < 7:
            k(f"s_add_u32 s40, s40, {2*6144*4}")
    k.label("L_ql_skip")
    MQ = DEPTH - 2
    issue(MQ)
    WQW = min(MQ, NQ + MQ - 24)
    k(f"""
    s_waitcnt vmcnt({WQW})
    s_mov_b32 s47, 0
    """)
    k.label("L_chk")
    k(f"""
    s_nop 1
    v_add_u32_dpp v9, v248, v248 quad_perm:[1,0,3,2] row_mask:0xf bank_mask:0xf
    s_nop 1
    v_add_u32_dpp v10, v9, v9 quad_perm:[2,3,0,1] row_mask:0xf bank_mask:0xf
    s_nop 1
    v_add_u32_dpp v9, v10, v10 row_half_mirror row_mask:0xf bank_mask:0xf
    s_nop 1
    v_readfirstlane_b32 s41, v9
    s_nop 3
    s_cmp_ge_u32 s41, 256
    s_cbranch_scc1 L_chk_done
    s_add_u32 s47, s47, 1
    s_cmp_ge_u32 s47, {SPIN_MAX}
    s_cbranch_scc1 L_chk_done
    s_sleep 2
    v_and_b32 v8, 7, v1
    v_lshlrev_b32 v8, 5, v8
    buffer_load_dword v248, v8, s[72:75], 0 offen sc1
    s_waitcnt vmcnt(0)
    s_branch L_chk
    """)
    k.label("L_chk_done")
    k("""
    s_cmp_ge_u32 s14, 3
    s_cbranch_scc1 L_q_skip
    """)
    k(f"v_max_u32 v9, v{ACC}, v{ACC+1}")
    for ks in range(2, 8):
        k(f"v_max_u32 v9, v9, v{ACC+ks}")
    k("""
    v_cmp_eq_u32 vcc, -1, v9
    s_nop 3
    s_cmp_eq_u64 vcc, 0
    s_cbranch_scc1 L_q_ok
    """)
    def qloads():
        k(f"""
        v_lshlrev_b32 v8, 2, v0
        s_mul_i32 s40, s17, 24576
        s_mul_i32 s41, s15, 768
        s_add_u32 s40, s40, s41
        s_add_u32 s40, s40, {WS_Q}
        """)
        for ks in range(8):
            k(f"buffer_load_dword v{ACC+ks}, v8, s[36:39], s40 offen sc1")
            if ks < 7:
                k(f"s_add_u32 s40, s40, {2*6144*4}")
    k.poll_data("L_pollq", qloads, [f"v{ACC+i}" for i in range(8)], "v9")
    k.label("L_q_ok")
    for ks in range(1, 8):
        k(f"v_add_f32 v{ACC}, v{ACC}, v{ACC+ks}")
    k(f"""
    v_cvt_pk_bf16_f32 v9, v{ACC}, v{ACC}
    v_lshlrev_b32 v8, 1, v0
    ds_write_b16 v8, v9 offset:{A_LDS_Q}
    """)
    k.label("L_q_skip")
    issue(48, wait=False)
    k("""
    s_waitcnt lgkmcnt(0)
    s_barrier
    """)
    for j in range(3):
        k(f"ds_read_b128 v[{QC+4*j}:{QC+4*j+3}], v{2+j} offset:{A_LDS_Q}")
    k(f"""
    s_mul_i32 s47, s14, 6144
    s_add_u32 s47, s47, {A_LDS_B}
    v_lshlrev_b32 v8, 2, v1
    v_add_u32 v8, s47, v8
    s_waitcnt lgkmcnt(0)
    """)
    for i in range(24):
        j = i % 3
        r = 10 + (i % 4)
        k(f"""
        v_dot2_f32_bf16 v{r}, v{KD+4*i}, v{QC+4*j}, 0
        v_dot2_f32_bf16 v{r}, v{KD+4*i+1}, v{QC+4*j+1}, v{r}
        v_dot2_f32_bf16 v{r}, v{KD+4*i+2}, v{QC+4*j+2}, v{r}
        v_dot2_f32_bf16 v{r}, v{KD+4*i+3}, v{QC+4*j+3}, v{r}
        s_nop 2
        ds_write_b32 v8, v{r} offset:{256*i}
        """)

    k(f"""
    v_mul_u32_u24 v9, 96, v1
    v_add_u32 v9, s47, v9
    s_waitcnt lgkmcnt(0)
    """)
    for q in range(6):
        k(f"ds_read_b128 v[{KD+4*q}:{KD+4*q+3}], v9 offset:{16*q}")
    k("s_waitcnt lgkmcnt(0)")
    k(f"v_add_f32 v10, v{KD}, v{KD+1}")
    for e in range(2, 24):
        k(f"v_add_f32 v10, v10, v{KD+e}")
    k.stamp(3)
    k(f"""
    s_cmp_ge_u32 s16, 20
    s_cbranch_scc1 L_pf_done
    v_and_b32 v8, 3, v0
    v_lshrrev_b32 v9, 2, v0
    v_mul_u32_u24 v9, 1280, v9
    v_lshlrev_b32 v8, 4, v8
    v_add_u32 v9, v9, v8
    s_mul_i32 s40, s19, {768*1280}
    s_lshl_b32 s41, s16, 6
    s_add_u32 s40, s40, s41
    """)
    for p in range(6):
        k(f"buffer_load_dwordx4 v[{PF+4*p}:{PF+4*p+3}], v9, s[52:55], s40 offen nt")
        if p < 5:
            k(f"s_add_u32 s40, s40, {128*1280}")
    k.label("L_pf_done")
    k.bf16r("v10")
    k(f"v_mul_f32 v10, {SCALE}, v10")
    k.bf16r("v10")
    k("v_mov_b32 v12, v10")
    k.allreduce("v_max_f32", "v12", "v13", 44)
    k(f"""
    v_sub_f32 v10, v10, v12
    v_mul_f32 v10, {LOG2E}, v10
    v_exp_f32 v10, v10
    s_nop 0
    v_mov_b32 v13, v10
    """)
    k.allreduce("v_add_f32", "v13", "v11", 44)
    k(f"""
    s_lshl_b32 s47, s14, 8
    s_add_u32 s47, s47, {A_LDS_P}
    v_lshlrev_b32 v8, 2, v1
    v_add_u32 v8, s47, v8
    ds_write_b32 v8, v10
    s_lshl_b32 s40, s14, 3
    v_mov_b32 v8, s40
    ds_write_b64 v8, v[12:13] offset:{A_LDS_M}
    v_add_u32 v8, s47, v5
    v_add_u32 v9, s47, v6
    v_add_u32 v10, s47, v7
    s_waitcnt lgkmcnt(0)
    """)
    for a in range(24):
        k(f"v_mov_b32 v{ACC+a}, 0")

    def accum(data, sc, j):
        for d in range(4):
            k(f"""
            v_lshlrev_b32 v14, 16, v{data+d}
            v_and_b32 v15, 0xffff0000, v{data+d}
            v_fmac_f32 v{ACC+8*j+2*d}, {sc}, v14
            v_fmac_f32 v{ACC+8*j+2*d+1}, {sc}, v15
            """)
    for g in range(8):
        k(f"""
        ds_read_b32 v11, v8 offset:{32*g}
        ds_read_b32 v12, v9 offset:{32*g}
        ds_read_b32 v13, v10 offset:{32*g}
        """)
        for j in range(3):
            i = 3 * g + j
            k(f"s_waitcnt vmcnt({23-i+NPF}) lgkmcnt({2-j})")
            accum(VD + 4 * i, f"v{11+j}", j)
    k(f"""
    s_mul_i32 s47, s14, 6144
    v_lshlrev_b32 v8, 5, v1
    v_add_u32 v8, s47, v8
    """)
    for j in range(3):
        k(f"""
        ds_write_b128 v8, v[{ACC+8*j}:{ACC+8*j+3}] offset:{A_LDS_A+2048*j}
        ds_write_b128 v8, v[{ACC+8*j+4}:{ACC+8*j+7}] offset:{A_LDS_A+2048*j+16}
        """)
    k.stamp(4)
    k("""
    s_waitcnt lgkmcnt(0)
    s_barrier
    s_cmp_ge_u32 s14, 3
    s_cbranch_scc1 L_att_fin
    v_mov_b32 v8, 0
    """)
    ML = 80
    for w in range(4):
        k(f"ds_read_b128 v[{ML+4*w}:{ML+3+4*w}], v8 offset:{A_LDS_M+16*w}")
    k("s_waitcnt lgkmcnt(0)")
    k(f"v_max_f32 v9, v{ML}, v{ML+2}")
    for w in range(2, 8):
        k(f"v_max_f32 v9, v9, v{ML+2*w}")
    for w in range(8):
        k(f"""
        v_sub_f32 v{96+w}, v{ML+2*w}, v9
        v_mul_f32 v{96+w}, {LOG2E}, v{96+w}
        v_exp_f32 v{96+w}, v{96+w}
        """)
    k(f"s_nop 0\nv_mul_f32 v10, v96, v{ML+1}")
    for w in range(1, 8):
        k(f"v_fmac_f32 v10, v{96+w}, v{ML+1+2*w}")
    k("v_lshlrev_b32 v8, 2, v0\nv_mov_b32 v11, 0")
    for half in range(2):
        for w in range(4):
            for r in range(8):
                k(f"ds_read_b32 v{104+8*w+r}, v8 offset:{A_LDS_A+6144*(4*half+w)+768*r}")
        k("s_waitcnt lgkmcnt(0)")
        for w in range(4):
            k(f"v_add_f32 v12, v{104+8*w}, v{105+8*w}")
            for r in range(2, 8):
                k(f"v_add_f32 v12, v12, v{104+8*w+r}")
            k(f"v_fmac_f32 v11, v{96+4*half+w}, v12")
    k(f"""
    s_lshl_b32 s40, s17, 5
    s_add_u32 s40, s40, s15
    s_lshl_b32 s40, s40, 2
    s_add_u32 s40, s40, s18
    s_lshl_b32 s40, s40, 10
    buffer_store_dword v11, v8, s[36:39], s40 offen offset:{WS_P2} sc1
    v_mov_b32 v12, v9
    v_mov_b32 v13, v10
    v_cmp_eq_u32 vcc, 0, v0
    s_and_saveexec_b64 s[42:43], vcc
    buffer_store_dwordx2 v[12:13], v8, s[36:39], s40 offen offset:768 sc1
    s_mov_b64 exec, s[42:43]
    """)
    k.label("L_att_fin")
    k("s_barrier")
    k.stamp(5)
    k("""
    s_cmp_ge_u32 s16, 20
    s_cbranch_scc1 L_ffn
    """)
    k(f"""
    s_lshr_b32 s40, s14, 2           ; b
    s_and_b32 s41, s14, 3            ; hh
    s_lshl_b32 s42, s40, 5
    s_lshl_b32 s43, s19, 2
    s_add_u32 s42, s42, s43
    s_add_u32 s42, s42, s41
    s_lshl_b32 s42, s42, 12
    v_lshlrev_b32 v8, 2, v1
    v_mov_b32 v9, 0
    """)
    def p2loads():
        for s in range(4):
            k(f"buffer_load_dwordx2 v[{80+2*s}:{81+2*s}], v9, s[36:39], s42 offen offset:{1024*s+768} sc1")
            for q in range(3):
                k(f"buffer_load_dword v{88+3*s+q}, v8, s[36:39], s42 offen offset:{1024*s+256*q} sc1")
    def p2light():
        for s_ in range(4):
            k(f"buffer_load_dwordx2 v[{80+2*s_}:{81+2*s_}], v9, s[36:39], s42 offen offset:{1024*s_+768} sc1")
    k.poll_data("L_pollA0", p2light, [f"v{80+i}" for i in range(8)], "v100", sleep=2)
    k.poll_data("L_pollA", p2loads, [f"v{80+i}" for i in range(20)], "v100", sleep=1)
    k.stamp(6)
    k("""
    v_max_f32 v100, v80, v82
    v_max_f32 v100, v100, v84
    v_max_f32 v100, v100, v86
    """)
    for s in range(4):
        k(f"""
        v_sub_f32 v{101+s}, v{80+2*s}, v100
        v_mul_f32 v{101+s}, {LOG2E}, v{101+s}
        v_exp_f32 v{101+s}, v{101+s}
        """)
    k("""
    s_nop 0
    v_mul_f32 v105, v101, v81
    v_fmac_f32 v105, v102, v83
    v_fmac_f32 v105, v103, v85
    v_fmac_f32 v105, v104, v87
    v_rcp_f32 v105, v105
    """)
    k(f"""
    s_mul_i32 s43, s40, 3072
    s_mul_i32 s44, s41, 768
    s_add_u32 s43, s43, s44
    v_add_u32 v9, s43, v8
    """)
    for q in range(3):
        k(f"""
        v_mul_f32 v{106+q}, v101, v{88+q}
        v_fmac_f32 v{106+q}, v102, v{91+q}
        v_fmac_f32 v{106+q}, v103, v{94+q}
        v_fmac_f32 v{106+q}, v104, v{97+q}
        v_mul_f32 v{106+q}, v{106+q}, v105
        """)
        k.bf16r(f"v{106+q}")
        k(f"ds_write_b32 v9, v{106+q} offset:{T_O+256*q}")
    k("""
    s_waitcnt lgkmcnt(0)
    s_barrier
    v_lshrrev_b32 v8, 2, v0
    v_lshlrev_b32 v8, 2, v8
    """)
    for a in range(16):
        k(f"v_mov_b32 v{ACC+a}, 0")
    for p in range(6):
        k(f"""
        ds_read_b32 v{80+2*p}, v8 offset:{T_O+512*p}
        ds_read_b32 v{81+2*p}, v8 offset:{T_O+3072+512*p}
        """)
    k("s_waitcnt lgkmcnt(0)")
    for p in range(6):
        for d in range(4):
            k(f"""
            v_lshlrev_b32 v12, 16, v{PF+4*p+d}
            v_and_b32 v13, 0xffff0000, v{PF+4*p+d}
            v_fmac_f32 v{ACC+2*d}, v{80+2*p}, v12
            v_fmac_f32 v{ACC+2*d+1}, v{80+2*p}, v13
            v_fmac_f32 v{ACC+8+2*d}, v{81+2*p}, v12
            v_fmac_f32 v{ACC+8+2*d+1}, v{81+2*p}, v13
            """)
    k("v_lshlrev_b32 v8, 6, v0")
    for q in range(4):
        k(f"ds_write_b128 v8, v[{ACC+4*q}:{ACC+4*q+3}] offset:{T_R+16*q}")
    k(f"""
    s_waitcnt lgkmcnt(0)
    s_barrier
    v_lshrrev_b32 v8, 3, v0
    v_and_b32 v9, 7, v0
    v_lshrrev_b32 v10, 5, v8
    v_and_b32 v11, 31, v8
    v_lshrrev_b32 v12, 3, v11
    v_and_b32 v13, 7, v11
    v_lshlrev_b32 v14, 12, v9
    v_lshlrev_b32 v12, 6, v12
    v_add_u32 v14, v14, v12
    v_lshlrev_b32 v12, 5, v10
    v_add_u32 v14, v14, v12
    v_lshlrev_b32 v13, 2, v13
    v_add_u32 v14, v14, v13
    """)
    for r in range(16):
        k(f"ds_read_b32 v{ACC+r}, v14 offset:{T_R+256*r}")
    k("s_waitcnt lgkmcnt(0)")
    for r in range(1, 16):
        k(f"v_add_f32 v{ACC}, v{ACC}, v{ACC+r}")
    k.reduce8(f"v{ACC}", f"v{ACC+1}")
    k(f"""
    v_mul_u32_u24 v12, 640, v10
    v_add_u32 v12, v12, v11
    v_lshlrev_b32 v12, 2, v12
    s_mul_i32 s40, s19, 5120
    s_lshl_b32 s41, s16, 7
    s_add_u32 s40, s40, s41
    s_add_u32 s40, s40, {WS_P3}
    v_cmp_eq_u32 vcc, 0, v9
    s_and_saveexec_b64 s[42:43], vcc
    buffer_store_dword v{ACC}, v12, s[36:39], s40 offen sc1
    s_mov_b64 exec, s[42:43]
    """)
    k.stamp(7)
    k(f"""
    s_cmp_ge_u32 s2, 40
    s_cbranch_scc1 L_end
    s_cmp_lg_u32 s14, 0
    s_cbranch_scc1 L_p4_light_done
    v_mul_u32_u24 v8, 5120, v1
    v_add_u32 v9, 64, v1
    v_min_u32 v9, 95, v9
    v_mul_u32_u24 v9, 5120, v9
    s_lshl_b32 s42, s2, 7
    s_add_u32 s42, s42, {WS_P4}
    """)
    def p4light():
        k("""
        buffer_load_dword v16, v8, s[36:39], s42 offen sc1
        buffer_load_dword v17, v9, s[36:39], s42 offen sc1
        """)
    k.poll_data("L_pollC0", p4light, ["v16", "v17"], "v18", sleep=4)
    k.label("L_p4_light_done")
    k("s_barrier")
    k(f"""
    v_and_b32 v8, 31, v0
    v_lshrrev_b32 v9, 5, v0
    s_lshl_b32 s40, s2, 5
    v_add_u32 v10, s40, v8
    v_lshlrev_b32 v11, 2, v10
    v_mul_u32_u24 v12, {6*5120}, v9
    v_add_u32 v12, v12, v11
    """)
    def p4loads():
        k(f"s_mov_b32 s41, {WS_P4}")
        for i in range(6):
            k(f"buffer_load_dword v{16+i}, v12, s[36:39], s41 offen sc1")
            if i < 5:
                k("s_add_u32 s41, s41, 5120")
        k(f"""
        s_mov_b32 s41, {WS_H}
        buffer_load_dword v22, v11, s[36:39], s41 offen sc1
        """)
    k.poll_data("L_pollC", p4loads, [f"v{16+i}" for i in range(7)], "v23", sleep=2)
    k.stamp(8)
    for i in range(1, 6):
        k(f"v_add_f32 v16, v16, v{16+i}")
    k("""
    v_lshlrev_b32 v13, 2, v0
    ds_write_b32 v13, v16
    s_waitcnt lgkmcnt(0)
    s_barrier
    v_cmp_gt_u32 vcc, 32, v0
    s_and_saveexec_b64 s[42:43], vcc
    s_cbranch_execz L_end
    """)
    for q in range(16):
        k(f"ds_read_b32 v{24+q}, v13 offset:{128*q}")
    k("s_waitcnt lgkmcnt(0)")
    for q in range(1, 16):
        k(f"v_add_f32 v24, v24, v{24+q}")
    k.bf16r("v24")
    k("""
    v_add_f32 v24, v24, v22
    v_cvt_pk_bf16_f32 v24, v24, v24
    v_lshlrev_b32 v14, 1, v10
    buffer_store_short v24, v14, s[68:71], 0 offen
    s_branch L_end
    """)
    k.label("L_ffn")
    k(f"""
    v_and_b32 v8, 1, v0
    v_lshrrev_b32 v9, 1, v0
    v_and_b32 v9, 127, v9
    v_mul_u32_u24 v9, 3072, v9
    v_lshlrev_b32 v8, 4, v8
    v_add_u32 v9, v9, v8
    s_lshl_b32 s40, s13, 5
    """)
    for p in range(5):
        k(f"buffer_load_dwordx4 v[{PF+4*p}:{PF+4*p+3}], v9, s[48:51], s40 offen nt")
        if p < 4:
            k(f"s_add_u32 s40, s40, {128*3072}")
    k(f"""
    v_mul_u32_u24 v8, 205, v0
    v_lshrrev_b32 v8, 14, v8
    v_mul_u32_u24 v9, 80, v8
    v_sub_u32 v9, v0, v9
    v_mul_u32_u24 v8, 1280, v8
    v_lshlrev_b32 v9, 4, v9
    v_add_u32 v9, v9, v8
    s_mul_i32 s40, s13, {16*1280}
    """)
    for kk in range(3):
        k(f"buffer_load_dwordx4 v[{PF+20+4*kk}:{PF+23+4*kk}], v9, s[64:67], s40 offen nt")
        if kk < 2:
            k(f"s_add_u32 s40, s40, {6*1280}")
    for kk in range(3):
        k(f"""
        v_add_u32 v14, {512*kk}, v0
        v_min_u32 v14, 1279, v14
        v_lshlrev_b32 v{8+kk}, 2, v14
        v_lshlrev_b32 v14, 1, v14
        buffer_load_ushort v{11+kk}, v14, s[20:23], 0 offen
        """)
    k(f"""
    s_cmp_lg_u32 s14, 0
    s_cbranch_scc1 L_p3_light_done
    """)
    for q in range(3):
        k(f"""
        v_add_u32 v14, {64*q}, v1
        v_min_u32 v14, 159, v14
        v_and_b32 v15, 7, v14
        v_lshrrev_b32 v14, 3, v14
        v_mul_u32_u24 v15, 5120, v15
        v_lshlrev_b32 v14, 7, v14
        v_add_u32 v{104+q}, v14, v15
        """)
    def p3light():
        k(f"s_mov_b32 s40, {WS_P3}")
        for q in range(3):
            k(f"buffer_load_dword v{108+q}, v{104+q}, s[36:39], s40 offen sc1")
    k.poll_data("L_pollB0", p3light, ["v108", "v109", "v110"], "v14", sleep=4)
    k.label("L_p3_light_done")
    k("s_barrier")
    def p3loads():
        k(f"s_mov_b32 s40, {WS_P3}")
        for ks in range(8):
            for kk in range(3):
                k(f"buffer_load_dword v{80+3*ks+kk}, v{8+kk}, s[36:39], s40 offen sc1")
            if ks < 7:
                k("s_add_u32 s40, s40, 5120")
    k.poll_data("L_pollB", p3loads, [f"v{80+i}" for i in range(24)], "v14", sleep=int(os.environ.get("SL3", "4")))
    k.stamp(6)
    for kk in range(3):
        for ks in range(1, 8):
            k(f"v_add_f32 v{80+kk}, v{80+kk}, v{80+3*ks+kk}")
        k.bf16r(f"v{80+kk}")
        k(f"""
        v_lshlrev_b32 v{11+kk}, 16, v{11+kk}
        v_add_f32 v{80+kk}, v{80+kk}, v{11+kk}
        """)
        k.bf16r(f"v{80+kk}")
        k(f"ds_write_b32 v{8+kk}, v{80+kk} offset:{T_H}")
    k(f"""
    s_cmp_lg_u32 s13, 0
    s_cbranch_scc1 L_noh
    s_mov_b32 s40, {WS_H}
    """)
    for kk in range(3):
        k(f"buffer_store_dword v{80+kk}, v{8+kk}, s[36:39], s40 offen sc1")
    k.label("L_noh")
    k("""
    s_waitcnt lgkmcnt(0)
    s_barrier
    v_lshlrev_b32 v14, 2, v1
    """)
    for b in range(2):
        for e in range(10):
            k(f"ds_read_b32 v{104+10*b+e}, v14 offset:{T_H+2560*b+256*e}")
    k("s_waitcnt lgkmcnt(0)")
    for b in range(2):
        k.ln_stats([f"v{104+10*b+e}" for e in range(10)], "v26", "v27", f"v{76+b}", f"v{78+b}", 44)
    for a in range(16):
        k(f"v_mov_b32 v{ACC+a}, 0")
    k("""
    v_lshrrev_b32 v14, 1, v0
    v_and_b32 v14, 127, v14
    v_lshlrev_b32 v14, 2, v14
    """)
    for p in range(5):
        k(f"""
        ds_read_b32 v{104+2*p}, v14 offset:{T_H+512*p}
        ds_read_b32 v{105+2*p}, v14 offset:{T_H+2560+512*p}
        """)
    k("s_waitcnt lgkmcnt(0)")
    for p in range(5):
        for b in range(2):
            r = 104 + 2 * p + b
            k(f"v_sub_f32 v{r}, v{r}, v{76+b}")
            k.bf16r(f"v{r}")
            k(f"v_mul_f32 v{r}, v{r}, v{78+b}")
            k.bf16r(f"v{r}")
        for d in range(4):
            k(f"""
            v_lshlrev_b32 v34, 16, v{PF+4*p+d}
            v_and_b32 v35, 0xffff0000, v{PF+4*p+d}
            v_fmac_f32 v{ACC+2*d}, v{104+2*p}, v34
            v_fmac_f32 v{ACC+2*d+1}, v{104+2*p}, v35
            v_fmac_f32 v{ACC+8+2*d}, v{105+2*p}, v34
            v_fmac_f32 v{ACC+8+2*d+1}, v{105+2*p}, v35
            """)
    k("v_lshlrev_b32 v14, 6, v0")
    for q in range(4):
        k(f"ds_write_b128 v14, v[{ACC+4*q}:{ACC+4*q+3}] offset:{T_R+16*q}")
    k(f"""
    s_waitcnt lgkmcnt(0)
    s_barrier
    v_lshrrev_b32 v14, 3, v0
    v_and_b32 v15, 7, v0
    v_lshrrev_b32 v32, 5, v14
    v_lshrrev_b32 v33, 4, v14
    v_and_b32 v33, 1, v33
    v_lshrrev_b32 v34, 3, v14
    v_and_b32 v34, 1, v34
    v_and_b32 v35, 7, v14
    v_lshlrev_b32 v36, 11, v15
    v_lshlrev_b32 v32, 14, v32
    v_add_u32 v36, v36, v32
    v_lshlrev_b32 v34, 6, v34
    v_add_u32 v36, v36, v34
    v_lshlrev_b32 v33, 5, v33
    v_add_u32 v36, v36, v33
    v_lshlrev_b32 v35, 2, v35
    v_add_u32 v36, v36, v35
    """)
    for r in range(16):
        k(f"ds_read_b32 v{ACC+r}, v36 offset:{T_R+128*r}")
    k("s_waitcnt lgkmcnt(0)")
    for r in range(1, 16):
        k(f"v_add_f32 v{ACC}, v{ACC}, v{ACC+r}")
    k.reduce8(f"v{ACC}", f"v{ACC+1}")
    k.bf16r(f"v{ACC}")
    k(f"""
    v_lshlrev_b32 v32, 2, v14
    ds_write_b32 v32, v{ACC} offset:{T_GU}
    s_waitcnt lgkmcnt(0)
    s_barrier
    s_cmp_lg_u32 s14, 0
    s_cbranch_scc1 L_act_done
    v_and_b32 v13, 15, v0
    v_lshrrev_b32 v14, 5, v0
    v_lshrrev_b32 v15, 4, v0
    v_and_b32 v15, 1, v15
    v_lshlrev_b32 v16, 6, v14
    v_lshlrev_b32 v17, 2, v13
    v_add_u32 v16, v16, v17
    ds_read_b32 v18, v16 offset:{T_GU}
    ds_read_b32 v19, v16 offset:{T_GU+128}
    s_waitcnt lgkmcnt(0)
    v_mul_f32 v20, v18, v18
    v_mul_f32 v20, v20, v18
    v_mov_b32 v21, 0x3d372713
    v_fma_f32 v20, v20, v21, v18
    v_mul_f32 v20, 0x3f4c422a, v20
    v_mul_f32 v20, 0x4038aa3b, v20
    v_exp_f32 v20, v20
    s_nop 0
    v_add_f32 v20, 1.0, v20
    v_rcp_f32 v20, v20
    s_nop 0
    v_fma_f32 v20, v20, -2.0, 1.0
    v_add_f32 v20, 1.0, v20
    v_mul_f32 v20, v20, v18
    v_mul_f32 v20, 0.5, v20
    """)
    k.bf16r("v20")
    k("v_mul_f32 v20, v20, v19")
    k.bf16r("v20")
    k(f"""
    v_cmp_eq_u32 vcc, 0, v15
    s_nop 1
    v_cndmask_b32 v20, 0, v20, vcc
    v_lshlrev_b32 v16, 2, v0
    ds_write_b32 v16, v20 offset:{T_ACT}
    """)
    k.label("L_act_done")
    k(f"""
    s_waitcnt lgkmcnt(0)
    s_barrier
    v_mul_u32_u24 v14, 205, v0
    v_lshrrev_b32 v14, 14, v14
    v_lshlrev_b32 v14, 2, v14
    """)
    for a in range(16):
        k(f"v_mov_b32 v{ACC+a}, 0")
    for kk in range(3):
        k(f"""
        ds_read_b32 v{104+2*kk}, v14 offset:{T_ACT+24*kk}
        ds_read_b32 v{105+2*kk}, v14 offset:{T_ACT+128+24*kk}
        """)
    k("s_waitcnt lgkmcnt(0)")
    for kk in range(3):
        for d in range(4):
            k(f"""
            v_lshlrev_b32 v34, 16, v{PF+20+4*kk+d}
            v_and_b32 v35, 0xffff0000, v{PF+20+4*kk+d}
            v_fmac_f32 v{ACC+2*d}, v{104+2*kk}, v34
            v_fmac_f32 v{ACC+2*d+1}, v{104+2*kk}, v35
            v_fmac_f32 v{ACC+8+2*d}, v{105+2*kk}, v34
            v_fmac_f32 v{ACC+8+2*d+1}, v{105+2*kk}, v35
            """)
    k(f"""
    v_cmp_gt_u32 vcc, 480, v0
    s_and_saveexec_b64 s[42:43], vcc
    v_lshlrev_b32 v14, 6, v0
    """)
    for q in range(4):
        k(f"ds_write_b128 v14, v[{ACC+4*q}:{ACC+4*q+3}] offset:{T_D+16*q}")
    k(f"""
    s_mov_b64 exec, s[42:43]
    s_waitcnt lgkmcnt(0)
    s_barrier
    s_mul_i32 s40, s13, 5120
    s_add_u32 s40, s40, {WS_P4}
    """)
    for kk in range(3):
        k(f"""
        v_lshrrev_b32 v14, 2, v{8+kk}
        v_cmp_le_u32 vcc, 640, v14
        s_nop 1
        v_cndmask_b32 v15, 0, 1, vcc
        v_mul_u32_u24 v32, 640, v15
        v_sub_u32 v14, v14, v32
        v_lshrrev_b32 v32, 3, v14
        v_and_b32 v33, 7, v14
        v_lshlrev_b32 v32, 6, v32
        v_lshlrev_b32 v33, 2, v33
        v_add_u32 v32, v32, v33
        v_lshlrev_b32 v15, 5, v15
        v_add_u32 v32, v32, v15
        """)
        for r in range(6):
            k(f"ds_read_b32 v{104+6*kk+r}, v32 offset:{T_D+5120*r}")
    k("s_waitcnt lgkmcnt(0)")
    for kk in range(3):
        for r in range(1, 6):
            k(f"v_add_f32 v{104+6*kk}, v{104+6*kk}, v{104+6*kk+r}")
        k(f"buffer_store_dword v{104+6*kk}, v{8+kk}, s[36:39], s40 offen sc1")
    k.label("L_end")
    if STAMP:
        k.stamp(9)
        k(f"""
        s_mov_b64 exec, -1
        s_cmp_ge_u32 s2, 256
        s_cbranch_scc1 L_end2
        s_cmp_lg_u32 s14, 0
        s_cbranch_scc1 L_end2
        s_lshl_b32 s40, s2, 6
        s_add_u32 s40, s40, {WS_T}
        v_mov_b32 v8, 0
        v_cmp_eq_u32 vcc, 0, v1
        s_and_saveexec_b64 s[42:43], vcc
        """)
        for i in range(10):
            k(f"v_mov_b32 v9, s{3+i}\nbuffer_store_dword v9, v8, s[36:39], s40 offen offset:{4*i}\ns_nop 1")
        k.label("L_end2")
    k("s_endpgm")
    return k.text()


def main():
    ref = open(REF).read().split("\n")
    hdr = [l for l in ref if l.startswith(";") and "@launch" not in l and "Override launch" not in l and "grid=ceil" not in l]
    name = NAME + "_kernel"
    out = "\n".join(hdr) + "\n"
    out += f"; @launch grid=(256,1,1) block=(512,1,1) lds={A_LDS}\n"
    out += '.amdgcn_target "amdgcn-amd-amdhsa--gfx950"\n.text\n'
    out += f".globl {name}\n.p2align 8\n.type {name},@function\n{name}:\n" + gen()
    out += f""".section .rodata,"a"
.p2align 6
.amdhsa_kernel {name}
  .amdhsa_next_free_vgpr 256
  .amdhsa_next_free_sgpr 102
  .amdhsa_accum_offset 256
  .amdhsa_group_segment_fixed_size 0
  .amdhsa_kernarg_size 96
  .amdhsa_user_sgpr_count 2
  .amdhsa_user_sgpr_kernarg_segment_ptr 1
  .amdhsa_system_sgpr_workgroup_id_x 1
.end_amdhsa_kernel
"""
    open(os.environ.get("OUTF", OUT), "w").write(out)


main()
```
